```python
import torch

def _softmax(x, axis=-1):
    return torch.softmax(x, dim=axis)
def _gelu(x):
    return torch.nn.functional.gelu(x, approximate="tanh")
def _silu(x):
    return torch.nn.functional.silu(x)
def _sigmoid(x):
    return torch.sigmoid(x)
def _layernorm(x, axis=-1, eps=1e-5):
    m = x.mean(dim=axis, keepdim=True)
    v = x.var(dim=axis, keepdim=True, unbiased=False)
    return (x - m) / torch.sqrt(v + eps)
def _scatter_add(tgt, idx, src, axis=0):
    return tgt.clone().index_add_(axis, idx, src)
def _segment_sum(src, seg, n):
    out = torch.zeros((n,) + src.shape[1:], dtype=src.dtype)
    return out.index_add_(0, seg, src)
def _pad(x, pw):
    flat = tuple(v for pair in reversed(pw) for v in pair)
    return torch.nn.functional.pad(x, flat)

kernel_name = 'concat_heads__mha_block_cached__mha_block_cached__near_ridge'

def setup_inputs():

    _w = (lambda a: (lambda t: t.to(torch.bfloat16) if t.is_floating_point() else t)(torch.as_tensor(a)))
    def _A_setup():
        B, Sq, D = 8, 144, 640
        H, Sk, Dh = 32, 512, 128
        return {
            "x": _w((lambda *s: torch.randn(*s, dtype=torch.bfloat16) * 0.8)(B, Sq, D)),
            "k_cache": _w((lambda *s: torch.randn(*s, dtype=torch.bfloat16) * 0.8)(B, H, Sk, Dh)),
            "v_cache": _w((lambda *s: torch.randn(*s, dtype=torch.bfloat16) * 0.05)(B, H, Sk, Dh)),
            "wq": _w((lambda *s: torch.randn(*s, dtype=torch.bfloat16) * 0.8)(D, H * Dh) * (D ** -0.5)),
            "wo": _w((lambda *s: torch.randn(*s, dtype=torch.bfloat16) * 0.05)(H * Dh, D) * ((H * Dh) ** -0.5)),
        }
    _A_in = _A_setup()

    def _B_setup():
        B, Sq, D = 8, 144, 640
        H, Sk, Dh = 32, 512, 128
        return {
            "x": _w((lambda *s: torch.randn(*s, dtype=torch.bfloat16) * 0.8)(B, Sq, D)),
            "k_cache": _w((lambda *s: torch.randn(*s, dtype=torch.bfloat16) * 0.8)(B, H, Sk, Dh)),
            "v_cache": _w((lambda *s: torch.randn(*s, dtype=torch.bfloat16) * 0.05)(B, H, Sk, Dh)),
            "wq": _w((lambda *s: torch.randn(*s, dtype=torch.bfloat16) * 0.8)(D, H * Dh) * (D ** -0.5)),
            "wo": _w((lambda *s: torch.randn(*s, dtype=torch.bfloat16) * 0.05)(H * Dh, D) * ((H * Dh) ** -0.5)),
        }
    _B_in = _B_setup()

    return {
        "A_x": _A_in["x"],
        "A_k_cache": _A_in["k_cache"],
        "A_v_cache": _A_in["v_cache"],
        "A_wq": _A_in["wq"],
        "A_wo": _A_in["wo"],
        "B_x": _B_in["x"],
        "B_k_cache": _B_in["k_cache"],
        "B_v_cache": _B_in["v_cache"],
        "B_wq": _B_in["wq"],
        "B_wo": _B_in["wo"],
    }

def reference(A_x, A_k_cache, A_v_cache, A_wq, A_wo, B_x, B_k_cache, B_v_cache, B_wq, B_wo):
    def _A_ref(x, k_cache, v_cache, wq, wo):
        B, Sq, D = x.shape
        H, Dh = 32, 128
        q = (lambda x, *d: x.permute(*d))((x @ wq).reshape(B, Sq, H, Dh), 0, 2, 1, 3)
        scores = torch.einsum("bhqd,bhkd->bhqk", q, k_cache) * (Dh ** -0.5)
        p = _softmax(scores, axis=-1)
        o = torch.einsum("bhqk,bhkd->bhqd", p, v_cache)
        return (lambda x, *d: x.permute(*d))(o, 0, 2, 1, 3).reshape(B, Sq, H * Dh) @ wo

    def _B_ref(x, k_cache, v_cache, wq, wo):
        B, Sq, D = x.shape
        H, Dh = 32, 128
        q = (lambda x, *d: x.permute(*d))((x @ wq).reshape(B, Sq, H, Dh), 0, 2, 1, 3)
        scores = torch.einsum("bhqd,bhkd->bhqk", q, k_cache) * (Dh ** -0.5)
        p = _softmax(scores, axis=-1)
        o = torch.einsum("bhqk,bhkd->bhqd", p, v_cache)
        return (lambda x, *d: x.permute(*d))(o, 0, 2, 1, 3).reshape(B, Sq, H * Dh) @ wo

    a = _A_ref(A_x, A_k_cache, A_v_cache, A_wq, A_wo)
    b = _B_ref(B_x, B_k_cache, B_v_cache, B_wq, B_wo)
    return torch.concatenate([a, b], axis=-1)
```

```python
import re

REG_RE = re.compile(r'^(v|a|s)(\d+)$|^(v|a|s)\[(\d+):(\d+)\]$')

def regs_of(tok):
    tok = tok.strip()
    neg = tok.lstrip('-')
    m = re.match(r'^abs\((.*)\)$', neg)
    if m: neg = m.group(1)
    m = re.match(r'^\|(.*)\|$', neg)
    if m: neg = m.group(1)
    m = REG_RE.match(neg)
    if m:
        if m.group(1):
            return [(m.group(1), int(m.group(2)))]
        return [(m.group(3), i) for i in range(int(m.group(4)), int(m.group(5)) + 1)]
    if neg == 'vcc': return [('s', 106), ('s', 107)]
    if neg == 'vcc_lo': return [('s', 106)]
    if neg == 'vcc_hi': return [('s', 107)]
    if neg == 'exec': return [('s', 126), ('s', 127)]
    if neg == 'm0': return [('s', 124)]
    return []

TRANS = ('v_exp_f32', 'v_log_f32', 'v_rcp_f32', 'v_rsq_f32', 'v_sqrt_f32', 'v_sin_f32', 'v_cos_f32')
S_NODST = ('s_cmp', 's_cbranch', 's_waitcnt', 's_barrier', 's_nop', 's_branch', 's_setprio', 's_endpgm', 's_sleep', 's_bitcmp', 's_setreg', 's_sethalt')

class Ins:
    __slots__ = ('text', 'op', 'kind', 'dst', 'src', 'srcA', 'srcB', 'srcC', 'tag', 'passes', 'wide', 'lds', 'nowait', 'comment')
    def __init__(self, text, tag=None):
        self.text = text
        self.tag = tag
        self.nowait = False
        body = text.split(';')[0].strip()
        parts = body.split(None, 1)
        self.op = parts[0]
        rest = parts[1] if len(parts) > 1 else ''
        ops = []
        cur = ''; depth = 0
        for ch in rest:
            if ch in '[(': depth += 1
            if ch in '])': depth -= 1
            if ch == ',' and depth == 0:
                ops.append(cur.strip()); cur = ''
            else:
                cur += ch
        if cur.strip(): ops.append(cur.strip())
        mods = ''
        if ops:
            last = ops[-1].split(None, 1)
            ops[-1] = last[0]
            if len(last) > 1: mods = last[1]
        op = self.op
        self.dst = []; self.src = []; self.srcA = []; self.srcB = []; self.srcC = []
        self.passes = 0; self.wide = False; self.lds = False
        R = lambda i: regs_of(ops[i]) if i < len(ops) else []
        if op.startswith('v_mfma'):
            self.kind = 'mfma'
            self.dst = R(0); self.srcA = R(1); self.srcB = R(2); self.srcC = R(3)
            self.src = self.srcA + self.srcB + self.srcC
            self.passes = 8 if '32x32' in op else 4
        elif op.startswith('ds_read') or op.startswith('ds_bpermute') or op.startswith('ds_swizzle') or op.startswith('ds_permute'):
            self.kind = 'dsr'
            self.dst = R(0); self.src = [r for i in range(1, len(ops)) for r in R(i)]
        elif op.startswith('ds_write'):
            self.kind = 'dsw'
            self.src = [r for i in range(len(ops)) for r in R(i)]
        elif op.startswith('ds_add') :
            self.kind = 'dsw'
            self.src = [r for i in range(len(ops)) for r in R(i)]
        elif op.startswith('buffer_load') or op.startswith('global_load') :
            allmods = (mods + ' ' + ' '.join(ops[-1:])).split()
            if 'lds' in mods.split() or op.startswith('global_load_lds'):
                self.kind = 'dma'; self.lds = True
                self.src = [r for i in range(len(ops)) for r in R(i)] + [('s', 124)]
            else:
                self.kind = 'vld'
                self.dst = R(0); self.src = [r for i in range(1, len(ops)) for r in R(i)]
        elif op.startswith('buffer_store') or op.startswith('global_store'):
            self.kind = 'vst'
            self.src = [r for i in range(len(ops)) for r in R(i)]
            self.wide = ('x4' in op or 'x3' in op)
            if self.wide:
                self.srcA = R(0) if op.startswith('buffer') else R(1)
        elif op.startswith('buffer_atomic') or op.startswith('global_atomic'):
            self.kind = 'vat'
            ret = 'sc0' in mods.split()
            if ret:
                self.dst = R(0)
                self.src = [r for i in range(1 if op.startswith('global') else 0, len(ops)) for r in R(i)]
            else:
                self.src = [r for i in range(len(ops)) for r in R(i)]
        elif op.startswith('buffer_inv') or op.startswith('buffer_wbl2'):
            self.kind = 'vst'
        elif op.startswith('s_load') or op.startswith('s_memtime') or op.startswith('s_memrealtime') or op.startswith('s_buffer_load'):
            self.kind = 'smem'
            self.dst = R(0); self.src = [r for i in range(1, len(ops)) for r in R(i)]
        elif op.startswith('s_'):
            self.kind = 'salu'
            if any(op.startswith(p) for p in S_NODST):
                self.src = [r for i in range(len(ops)) for r in R(i)]
            else:
                self.dst = R(0); self.src = [r for i in range(1, len(ops)) for r in R(i)]
                if 'saveexec' in op:
                    self.dst = self.dst + [('s', 126), ('s', 127)]
                if op.startswith('s_addk') or op.startswith('s_mulk'):
                    self.src = self.src + self.dst
            if op == 's_waitcnt': self.kind = 'wait'
            if op == 's_nop': self.kind = 'nop'
            if op == 's_barrier': self.kind = 'barrier'
            if op.startswith('s_cbranch') or op == 's_branch': self.kind = 'branch'
        elif op.startswith('v_'):
            self.kind = 'valu'
            base = re.sub(r'_(e32|e64|dpp|sdwa)$', '', op)
            if base in TRANS: self.kind = 'trans'
            if op.startswith('v_permlane') and 'swap' in op:
                self.dst = R(0) + R(1); self.src = R(0) + R(1)
            elif op.startswith('v_cmp'):
                self.dst = R(0); self.src = [r for i in range(1, len(ops)) for r in R(i)]
            elif op.startswith('v_add_co') or op.startswith('v_sub_co') or op.startswith('v_addc_co') or op.startswith('v_subb_co'):
                self.dst = R(0) + R(1); self.src = [r for i in range(2, len(ops)) for r in R(i)]
            else:
                self.dst = R(0); self.src = [r for i in range(1, len(ops)) for r in R(i)]
                if base.startswith('v_fmac') or base.startswith('v_pk_fmac') or base.startswith('v_writelane') or 'dpp' in op:
                    self.src = self.src + self.dst
                if base.startswith('v_cndmask') and len(ops) == 3:
                    self.src = self.src + [('s', 106), ('s', 107)]
        else:
            raise ValueError("unknown instruction: " + text)

    def states(self):
        if self.kind == 'nop':
            return int(self.text.split()[1], 0) + 1
        return 1

def is_valu(i): return i.kind in ('valu', 'trans')

def needed_gap(p, c):
    need = 0
    pd = set(p.dst);
    if is_valu(p):
        pv = {r for r in pd if r[0] in 'va'}
        ps = {r for r in pd if r[0] == 's'}
        if c.kind == 'mfma' and pv & set(c.src): need = max(need, 2)
        if p.kind == 'trans' and c.kind == 'valu' and pv & set(c.src): need = max(need, 1)
        if p.kind == 'trans' and c.kind in ('mfma',) and pv & set(c.src): need = max(need, 2)
        if is_valu(c) and (c.op.startswith('v_readfirstlane') or c.op.startswith('v_readlane')) and pv & set(c.src): need = max(need, 1)
        if is_valu(c) and c.op.startswith('v_permlane') and pv & set(c.src): need = max(need, 2)
        if is_valu(c) and 'dpp' in c.text and pv & set(c.src): need = max(need, 2)
        if ps:
            if is_valu(c) and ps & set(c.src):
                need = max(need, 4 if (c.op.startswith('v_readlane') or c.op.startswith('v_writelane')) else 2)
            if c.kind in ('vld', 'vst', 'dma', 'vat') and ps & set(c.src): need = max(need, 5)
            if c.kind == 'mfma' and (('s',126) in ps or ('s',127) in ps): need = max(need, 4)
    if p.kind == 'mfma':
        big = p.passes == 8
        raw = 12 if big else 8
        ovl = 10 if big else 6
        war = 7 if big else 3
        if is_valu(c) and (pd & set(c.src) or pd & set(c.dst)): need = max(need, raw)
        if c.kind in ('dsr', 'dsw', 'vld', 'vst', 'vat', 'dma') and (pd & set(c.src) or pd & set(c.dst)): need = max(need, raw)
        if c.kind == 'mfma':
            if pd & (set(c.srcA) | set(c.srcB)): need = max(need, raw)
            if pd & set(c.srcC):
                if not (c.srcC == p.dst and c.passes == p.passes): need = max(need, ovl)
            if pd & set(c.dst) and not (c.dst == p.dst):
                need = max(need, ovl)
        if is_valu(c) and set(p.srcC) & set(c.dst): need = max(need, war)
    if p.kind == 'salu' and ('s', 124) in pd and c.kind == 'dma': need = max(need, 1)
    if p.kind == 'vst' and p.wide:
        data = set(p.srcA)
        if data & set(c.dst):
            need = max(need, 2 if is_valu(c) else 1)
    return need

class Prog:
    def __init__(self):
        self.items = []
    def __call__(self, text, tag=None):
        for line in text.split('\n'):
            line = line.strip()
            if not line or line.startswith(';'):
                continue
            self.items.append(Ins(line, tag))
    def label(self, name): self.items.append(('label', name))
    def raw(self, text): self.items.append(('raw', text))
    def comment(self, text): self.items.append(('raw', '; ' + text))
    def wait_tag(self, tag, lgkm0=False):
        self.items.append(('waittag', (tag, lgkm0)))
    def reset_state(self):
        self.items.append(('reset', None))
    def extend(self, other): self.items.extend(other.items)

    def insert_waits(self):
        out = []
        lg = []
        vm = []
        vt = []
        smem = False
        def emit_wait(vmn=None, lgn=None):
            s = 's_waitcnt'
            if vmn is not None: s += f' vmcnt({min(vmn,63)})'
            if lgn is not None: s += f' lgkmcnt({min(lgn,15)})'
            out.append(Ins(s))
        for it in self.items:
            if not isinstance(it, Ins):
                if it[0] == 'reset':
                    lg = []; vm = []; vt = []
                    continue
                if it[0] == 'waittag':
                    tag, lgkm0 = it[1]
                    idx = max([i for i, t in enumerate(vt) if t == tag], default=None)
                    n = None
                    if idx is not None:
                        n = len(vm) - 1 - idx
                        assert n <= 63, "vmcnt overflow"
                        vm = vm[len(vm) - n:] if n > 0 else []
                        vt = vt[len(vt) - n:] if n > 0 else []
                    if n is not None or lgkm0:
                        emit_wait(n, 0 if lgkm0 else None)
                        if lgkm0: lg = []
                    continue
                if it[0] == 'label':
                    pend = [x for x in lg if x] + [x for x in vm if x]
                    if pend:
                        raise RuntimeError(f"pending register loads at label {it[1]}: {pend[:3]}")
                    lg = []; vm = []; vt = []
                out.append(it); continue
            if it.kind == 'wait':
                m = re.search(r'vmcnt\((\d+)\)', it.text)
                if m:
                    n = int(m.group(1))
                    if len(vm) > n:
                        vm = vm[len(vm) - n:] if n > 0 else []
                        vt = vt[len(vt) - n:] if n > 0 else []
                m = re.search(r'lgkmcnt\((\d+)\)', it.text)
                if m:
                    n = int(m.group(1))
                    if len(lg) > n: lg = lg[len(lg) - n:] if n > 0 else []
                out.append(it); continue
            touched = set(it.src) | set(it.dst)
            need_lg = None; need_vm = None
            for idx, d in enumerate(lg):
                if d and (d & touched): need_lg = len(lg) - 1 - idx
            for idx, d in enumerate(vm):
                if d and (d & touched): need_vm = len(vm) - 1 - idx
            if it.kind == 'branch':
                pend = [x for x in lg if x] + [x for x in vm if x]
                if pend:
                    raise RuntimeError(f"pending register loads at branch {it.text}: {pend[:3]}")
            if need_lg is not None or need_vm is not None:
                emit_wait(need_vm, need_lg)
                if need_lg is not None:
                    n = min(need_lg, 15); lg = lg[len(lg) - n:] if n > 0 else []
                if need_vm is not None:
                    n = min(need_vm, 63); vm = vm[len(vm) - n:] if n > 0 else []; vt = vt[len(vt) - n:] if n > 0 else []
            out.append(it)
            if it.kind == 'dsr': lg.append(set(it.dst))
            elif it.kind == 'dsw': lg.append(None)
            elif it.kind == 'vld': vm.append(set(it.dst)); vt.append(it.tag)
            elif it.kind == 'vat': vm.append(set(it.dst) if it.dst else None); vt.append(it.tag)
            elif it.kind in ('vst', 'dma'): vm.append(None); vt.append(it.tag)
            if len(vm) > 63: raise RuntimeError("more than 63 VMEM ops outstanding in model at: " + it.text)
        self.items = out

    def insert_nops(self, window=24):
        out = []
        hist = []
        def gap_needed(c, hist):
            need = 0; dist = 0
            for p in reversed(hist):
                g = needed_gap(p, c)
                if g > dist: need = max(need, g - dist)
                dist += p.states()
                if dist >= 16: break
            return need
        for it in self.items:
            if not isinstance(it, Ins):
                out.append(it); continue
            n = gap_needed(it, hist)
            while n > 0:
                k = min(n, 8)
                nop = Ins(f's_nop {k-1}')
                out.append(nop); hist.append(nop); n -= k
            out.append(it); hist.append(it)
            hist = hist[-window:]
        self.items = out
        labels = {}
        lin = []
        for it in self.items:
            if isinstance(it, Ins): lin.append(it)
            elif it[0] == 'label': labels[it[1]] = len(lin)
        for i, ins in enumerate(lin):
            if ins.kind == 'branch':
                tgt = ins.text.split()[1]
                if tgt not in labels: continue
                h = lin[max(0, i - window): i + 1]
                j = labels[tgt]
                hh = list(h)
                for c in lin[j:j + 16]:
                    n = gap_needed(c, hh)
                    if n > 0:
                        raise RuntimeError(f"hazard across branch {ins.text} -> {c.text} needs {n}")
                    hh.append(c)

    def finish(self):
        self.insert_waits()
        self.insert_nops()
    def text(self):
        L = []
        for it in self.items:
            if isinstance(it, Ins): L.append('    ' + it.text)
            elif it[0] == 'label': L.append(it[1] + ':')
            elif it[0] == 'raw': L.append(it[1])
        return '\n'.join(L) + '\n'
    def count(self):
        from collections import Counter
        return Counter(i.kind for i in self.items if isinstance(i, Ins))

def interleave(primary, secondary, start=0, every=1, per=1):
    out = []; j = 0
    for i, p in enumerate(primary):
        out.append(p)
        if i >= start and (i - start) % every == 0:
            for _ in range(per):
                if j < len(secondary):
                    out.append(secondary[j]); j += 1
    out.extend(secondary[j:])
    return out
```

```python
from asmgen import *
import struct

def f2u(x): return struct.unpack('<I', struct.pack('<f', x))[0]

SLOT = 16384
NSLOT = 5
CSCALE = 1.4426950408889634 / (128 ** 0.5)

AV = 4
AK = 12
VD = 16
WD = 18
T = 20
XV = 2
NM = 24
S0 = 36
FR = 72
AO = 0; AOS = 64; AL = 96; AONES = 108; AQ = 112
QACC = 24; XB = 0; WF = 120

sW_ = 3
sX, sWq, sK, sV, sO = 24, 28, 32, 36, 40
sJ, sKs, sVs, sTile, sT0, sT1, sC, sClamp, sMask = 44, 45, 46, 47, 48, 49, 50, 51, 52
sXo = 53
sWb = 56
sM0b = 57
sD = 58
sPrevV = 59

def v(i, n=1): return f'v{i}' if n == 1 else f'v[{i}:{i+n-1}]'
def a(i, n=1): return f'a{i}' if n == 1 else f'a[{i}:{i+n-1}]'
def s(i, n=1): return f's{i}' if n == 1 else f's[{i}:{i+n-1}]'

def S_own(kt, qt): return S0 + ((kt >> 1) * 2 + qt) * 8 + (kt & 1) * 4
S_SH = S0 + 32
def P_own(qt, kp): return S0 + (kp * 2 + qt) * 8
def Qown(qt, p): return AQ + qt * 16 + p * 4
def Qsh(sidx): return AQ + 32 + sidx * 4
def Oown(t, qt): return AO + (t * 2 + qt) * 4
def Osh(t): return AOS + t * 4

def prologue(k, nwg, dbg=None):
    k(f's_cmp_ge_u32 s2, {nwg}')
    k('s_cbranch_scc1 L_end')
    k('s_load_dwordx8 s[8:15], s[0:1], 0')
    k('s_load_dwordx8 s[16:23], s[0:1], 40')
    k('s_load_dwordx2 s[4:5], s[0:1], 96')
    k('v_and_b32 v1, 63, v0')
    k('v_lshrrev_b32 v3, 6, v0')
    k('s_nop 0')
    k(f'v_readfirstlane_b32 s{sW_}, v3')
    k('s_and_b32 s60, s2, 7')
    k('s_lshr_b32 s61, s2, 3')
    k('s_lshr_b32 s62, s60, 2')
    k('s_and_b32 s63, s60, 3')
    k('s_lshr_b32 s64, s61, 5')
    k('s_and_b32 s65, s61, 3')
    k('s_lshl_b32 s63, s63, 3')
    k('s_lshl_b32 s64, s64, 2')
    k('s_add_u32 s63, s63, s64')
    k('s_add_u32 s63, s63, s65')
    k('s_lshr_b32 s64, s61, 2')
    k('s_and_b32 s64, s64, 7')
    k('s_waitcnt lgkmcnt(0)')
    k('s_cmp_eq_u32 s62, 0')
    for i in range(8):
        k(f's_cselect_b32 s{8+i}, s{8+i}, s{16+i}')
    k('s_mul_i32 s66, s64, 184320')
    k(f's_add_u32 s{sX}, s8, s66'); k(f's_addc_u32 s{sX+1}, s9, 0')
    k(f's_mov_b32 s{sX+2}, 184320'); k(f's_mov_b32 s{sX+3}, 0x20000')
    k('s_lshl_b32 s66, s63, 8')
    k(f's_add_u32 s{sWq}, s14, s66'); k(f's_addc_u32 s{sWq+1}, s15, 0')
    k(f's_sub_u32 s{sWq+2}, 5242880, s66'); k(f's_mov_b32 s{sWq+3}, 0x20000')
    k('s_lshl_b32 s66, s64, 5'); k('s_add_u32 s66, s66, s63'); k('s_lshl_b32 s67, s66, 17')
    k(f's_add_u32 s{sK}, s10, s67'); k(f's_addc_u32 s{sK+1}, s11, 0')
    k(f's_mov_b32 s{sK+2}, 131072'); k(f's_mov_b32 s{sK+3}, 0x20000')
    k(f's_add_u32 s{sV}, s12, s67'); k(f's_addc_u32 s{sV+1}, s13, 0')
    k(f's_mov_b32 s{sV+2}, 131072'); k(f's_mov_b32 s{sV+3}, 0x20000')
    k('s_lshl_b32 s67, s62, 8'); k('s_add_u32 s66, s66, s67'); k('s_mul_i32 s66, s66, 36864')
    k(f's_add_u32 s{sO}, s4, s66'); k(f's_addc_u32 s{sO+1}, s5, 0')
    k(f's_mov_b32 s{sO+2}, 36864'); k(f's_mov_b32 s{sO+3}, 0x20000')
    k(f's_lshl_b32 s{sM0b}, s{sW_}, 12')
    k(f's_mov_b32 s{sC}, {f2u(CSCALE):#x}')
    k(f's_mov_b32 s{sMask}, 0x40004000')
    k(f's_mul_i32 s{sXo}, s{sW_}, {32*1280}')
    k(f's_add_u32 s{sXo+1}, s{sXo}, {16*1280}')
    k(f's_mov_b32 s{sXo+2}, {128*1280}')
    k(f's_lshr_b32 s66, s{sW_}, 1'); k('s_lshl_b32 s66, s66, 18')
    k(f's_and_b32 s67, s{sW_}, 1'); k('s_lshl_b32 s67, s67, 15')
    k(f's_add_u32 s{sWb}, s66, s67')
    k('v_and_b32 v20, 15, v1')
    k('v_lshrrev_b32 v21, 4, v1')
    k('v_bfe_u32 v22, v1, 2, 2')
    k('v_and_b32 v23, 3, v1')
    k('v_mul_u32_u24 v2, 1280, v20')
    k(f'v_lshl_add_u32 v{XV}, v21, 4, v2')
    k('v_lshlrev_b32 v3, 1, v21')
    k('v_xor_b32 v3, v20, v3')
    k('v_lshlrev_b32 v3, 4, v3')
    k(f'v_lshl_add_u32 v{VD}, v21, 8, v3')
    k(f'v_xor_b32 v{VD+1}, 128, v{VD}')
    k(f'v_lshl_add_u32 v{WD}, v21, 13, v3')
    k(f'v_xor_b32 v{WD+1}, 128, v{WD}')
    k('v_lshl_add_u32 v3, v21, 2, v22')
    k('v_lshlrev_b32 v0, 8, v3')
    k('v_lshl_add_u32 v0, v23, 3, v0')
    k('v_and_b32 v3, 7, v3')
    k(f's_lshl_b32 s66, s{sW_}, 1')
    for t in range(8):
        k(f's_add_u32 s67, s66, {t}'); k('s_and_b32 s67, s67, 7')
        k(f'v_xor_b32 v{AV+t}, s67, v3')
        k(f'v_lshl_add_u32 v{AV+t}, v{AV+t}, 5, v0')
    k('v_and_b32 v3, 7, v20'); k('v_lshlrev_b32 v3, 1, v3'); k('v_xor_b32 v3, v21, v3')
    k('v_lshlrev_b32 v3, 4, v3')
    k(f'v_lshl_add_u32 v{AK}, v20, 8, v3')
    for si in range(1, 4):
        k(f'v_xor_b32 v{AK+si}, {64*si}, v{AK}')

def dma_w(k, st):
    slot = st % NSLOT
    k(f's_add_u32 m0, s{sM0b}, {slot*SLOT}')
    for il in range(4):
        k(f's_add_u32 s{sT0}, s{sWb}, {st*64*8192 + il*(65536-1024)}')
        k(f'buffer_load_dwordx4 v{WD + (il&1)}, {s(sWq,4)}, s{sT0} offen offset:{il*1024} lds', tag=f'tile{st}')

def dma_kv_static(k, n):
    j = (n - 10) // 2
    srd = sK if (n % 2 == 0) else sV
    slot = n % NSLOT
    k(f's_add_u32 m0, s{sM0b}, {slot*SLOT}')
    k(f's_add_u32 s{sT0}, s{sM0b}, {j*16384}')
    for il in range(4):
        k(f'buffer_load_dwordx4 v{VD + (il&1)}, {s(srd,4)}, s{sT0} offen offset:{il*1024} nt lds', tag=f'tile{n}')

def x_loads(k, st):
    b = XB + (st % 5) * 24
    for ks in range(2):
        for tl in range(3):
            k(f'buffer_load_dwordx4 {a(b + (ks*3+tl)*4, 4)}, v{XV}, {s(sX,4)}, s{sXo+tl} offen offset:{(2*st+ks)*64}')

def qp_stage(k, st):
    xb = XB + (st % 5) * 24
    reads = []; mf = []
    seq = []
    nfr = 6
    fi = 0
    items = []
    for ks in range(2):
        for t in range(8):
            f = WF + (fi % nfr) * 4; fi += 1
            rd = [f'ds_read_b64_tr_b16 {a(f,2)}, v{AV+t} offset:{ks*8192}',
                  f'ds_read_b64_tr_b16 {a(f+2,2)}, v{AV+t} offset:{ks*8192+4096}']
            m = []
            for qt in range(2):
                acc = QACC + (t*2+qt)*4
                c = v(acc,4) if not (st == 0 and ks == 0) else '0'
                m.append(f'v_mfma_f32_16x16x32_bf16 {v(acc,4)}, {a(f,4)}, {a(xb + (ks*3+qt)*4, 4)}, {c}')
            if t < 2:
                acc = QACC + 64 + t*4
                c = v(acc,4) if not (st == 0 and ks == 0) else '0'
                m.append(f'v_mfma_f32_16x16x32_bf16 {v(acc,4)}, {a(f,4)}, {a(xb + (ks*3+2)*4, 4)}, {c}')
            items.append((rd, m))
    ahead = nfr - 1
    for i in range(min(ahead, len(items))):
        for r_ in items[i][0]: k(r_)
    for i, (rd, m) in enumerate(items):
        if i + ahead < len(items):
            for r_ in items[i + ahead][0]: k(r_)
        for m_ in m: k(m_)

def cvt_frag(k, srcX, srcY, tmp):
    for r_ in (srcX, srcY):
        k(f'v_pk_mul_f32 {v(r_,2)}, {v(r_,2)}, {s(sC-0,2)} op_sel_hi:[1,0]')
        k(f'v_pk_mul_f32 {v(r_+2,2)}, {v(r_+2,2)}, {s(sC-0,2)} op_sel_hi:[1,0]')
    k(f'v_cvt_pk_bf16_f32 v{tmp}, v{srcX}, v{srcX+1}')
    k(f'v_cvt_pk_bf16_f32 v{tmp+1}, v{srcX+2}, v{srcX+3}')
    k(f'v_cvt_pk_bf16_f32 v{tmp+2}, v{srcY}, v{srcY+1}')
    k(f'v_cvt_pk_bf16_f32 v{tmp+3}, v{srcY+2}, v{srcY+3}')
    k(f'v_permlane32_swap_b32 v{tmp}, v{tmp+2}')
    k(f'v_permlane32_swap_b32 v{tmp+1}, v{tmp+3}')
    k(f'v_permlane16_swap_b32 v{tmp}, v{tmp+2}')
    k(f'v_permlane16_swap_b32 v{tmp+1}, v{tmp+3}')

def add_av(k, sreg):
    for t in range(8):
        k(f'v_add_u32 v{AV+t}, s{sreg}, v{AV+t}')

def qp_phase(k, dbg_q=False):
    for st in range(5):
        dma_w(k, st)
        if st == 0:
            x_loads(k, 0)
    for st in range(1, 5): x_loads(k, st)
    for st in range(10):
        k.wait_tag(f'tile{st}', lgkm0=True)
        k('s_barrier')
        n = st + 4
        if st >= 1:
            if n < 10: dma_w(k, n)
            else: dma_kv_static(k, n)
        qp_stage(k, st)
        if st + 5 < 10: x_loads(k, st + 5)
        if st < 9:
            d = ((st + 1) % NSLOT - st % NSLOT) * SLOT
            k(f's_mov_b32 s{sD}, {d & 0xffffffff:#x}')
            add_av(k, sD)
    k(f's_mov_b32 s{sD}, {((1 - 4) * SLOT) & 0xffffffff:#x}')
    k('s_waitcnt lgkmcnt(0)')
    k('s_barrier')
    add_av(k, sD)
    cvt_frag(k, QACC + 64, QACC + 68, T)
    k('v_lshlrev_b32 v0, 4, v1')
    k(f's_lshl_b32 s{sT0}, s{sW_}, 10')
    k(f's_add_u32 s{sT0}, s{sT0}, {4*SLOT}')
    k(f'v_add_u32 v3, s{sT0}, v0')
    k(f'ds_write_b128 v3, {v(T,4)}')
    for qt in range(2):
        for p in range(4):
            X = QACC + ((2*p)*2 + qt)*4; Y = QACC + ((2*p+1)*2 + qt)*4
            cvt_frag(k, X, Y, T)
            for i in range(4):
                k(f'v_accvgpr_write_b32 {a(Qown(qt,p)+i)}, v{T+i}')
    k('s_waitcnt lgkmcnt(0)')
    k('s_barrier')
    k(f'v_add_u32 v3, {4*SLOT}, v0')
    for si in range(4):
        k(f'ds_read_b128 {a(Qsh(si),4)}, v3 offset:{si*1024}')
    for i in range(108):
        k(f'v_accvgpr_write_b32 a{i}, 0')
    k(f'v_mov_b32 v3, 0x3f803f80')
    for i in range(4):
        k(f'v_accvgpr_write_b32 {a(AONES+i)}, v3')
    for i in range(12):
        k(f'v_mov_b32 v{NM+i}, 0')

def qk_code(k, w):
    nfr = 6
    items = []
    fi = 0
    for kt in range(4):
        for si in range(4):
            f = FR + (fi % nfr) * 4; fi += 1
            rd = [f'ds_read_b128 {v(f,4)}, v{AK+si} offset:{kt*4096}']
            m = []
            p = (si - w) & 3
            for qt in range(2):
                d = S_own(kt, qt)
                c = v(NM + qt*4, 4) if si == 0 else v(d, 4)
                m.append(f'v_mfma_f32_16x16x32_bf16 {v(d,4)}, {v(f,4)}, {a(Qown(qt,p),4)}, {c}')
            if kt == w:
                c = v(NM + 8, 4) if si == 0 else v(S_SH, 4)
                m.append(f'v_mfma_f32_16x16x32_bf16 {v(S_SH,4)}, {v(f,4)}, {a(Qsh(si),4)}, {c}')
            items.append((rd, m))
    ahead = nfr - 1
    for i in range(ahead):
        for r_ in items[i][0]: k(r_)
    for i, (rd, m) in enumerate(items):
        if i + ahead < len(items):
            for r_ in items[i + ahead][0]: k(r_)
        for m_ in m: k(m_)

def exp_code(k, with_or=True):
    groups = [(P_own(qt, kp), 8) for kp in range(2) for qt in range(2)] + [(S_SH, 4)]
    first = True
    for base, n in groups:
        for i in range(n): k(f'v_exp_f32 v{base+i}, v{base+i}')
        for i in range(n // 2): k(f'v_cvt_pk_bf16_f32 v{base+i}, v{base+2*i}, v{base+2*i+1}')
        if with_or:
            for i in range(0, n // 2, 2):
                if first:
                    k(f'v_or_b32 v{T}, v{base+i}, v{base+i+1}'); first = False
                else:
                    k(f'v_or3_b32 v{T}, v{base+i}, v{base+i+1}, v{T}')

def pv_code(k, w):
    nfr = 6
    items = []
    fi = 0
    for t in range(8):
        for kp in range(2):
            f = FR + (fi % nfr) * 4; fi += 1
            rd = [f'ds_read_b64_tr_b16 {v(f,2)}, v{AV+t} offset:{kp*8192}',
                  f'ds_read_b64_tr_b16 {v(f+2,2)}, v{AV+t} offset:{kp*8192+4096}']
            m = []
            for qt in range(2):
                d = Oown(t, qt)
                m.append(f'v_mfma_f32_16x16x32_bf16 {a(d,4)}, {v(f,4)}, {v(P_own(qt,kp),4)}, {a(d,4)}')
            if kp == (w >> 1):
                d = Osh(t)
                m.append(f'v_mfma_f32_16x16x16_bf16 {a(d,4)}, {v(f + 2*(w&1),2)}, {v(S_SH,2)}, {a(d,4)}')
            items.append((rd, m))
    lm = []
    for qt in range(2):
        for kp in range(2):
            lm.append(f'v_mfma_f32_16x16x32_bf16 {a(AL+qt*4,4)}, {a(AONES,4)}, {v(P_own(qt,kp),4)}, {a(AL+qt*4,4)}')
    lm.append(f'v_mfma_f32_16x16x16_bf16 {a(AL+8,4)}, {a(AONES,2)}, {v(S_SH,2)}, {a(AL+8,4)}')
    ahead = nfr - 1
    for i in range(ahead):
        for r_ in items[i][0]: k(r_)
    for m_ in lm: k(m_)
    for i, (rd, m) in enumerate(items):
        if i + ahead < len(items):
            for r_ in items[i + ahead][0]: k(r_)
        for m_ in m: k(m_)

def xlane_max(k, r, tmp):
    k(f'v_mov_b32 v{tmp}, v{r}')
    k(f'v_permlane16_swap_b32 v{r}, v{tmp}')
    k(f'v_max_f32 v{r}, v{r}, v{tmp}')
    k(f'v_mov_b32 v{tmp}, v{r}')
    k(f'v_permlane32_swap_b32 v{r}, v{tmp}')
    k(f'v_max_f32 v{r}, v{r}, v{tmp}')

def rare_code(k, w, lab):
    k.label(f'{lab}_rare')
    k(f's_mov_b32 s{sClamp}, 0')
    qk_code(k, w)
    k(f's_branch {lab}_rare2')
    k.label(f'{lab}_first')
    k(f's_mov_b32 s{sClamp}, 0xff7fffff')
    k.label(f'{lab}_rare2')
    k('s_nop 7')
    sets = [[S_own(kt, qt) + i for kt in range(4) for i in range(4)] for qt in range(2)] + [[S_SH + i for i in range(4)]]
    for ti, regs in enumerate(sets):
        d = T + ti
        k(f'v_max3_f32 v{d}, v{regs[0]}, v{regs[1]}, v{regs[2]}')
        i = 3
        while i < len(regs):
            if i + 1 < len(regs):
                k(f'v_max3_f32 v{d}, v{d}, v{regs[i]}, v{regs[i+1]}'); i += 2
            else:
                k(f'v_max_f32 v{d}, v{d}, v{regs[i]}'); i += 1
        xlane_max(k, d, T + 3)
        k(f'v_add_f32 v{d}, 0x40e00000, v{d}')
        k(f'v_max_f32 v{d}, s{sClamp}, v{d}')
        for r_ in regs: k(f'v_sub_f32 v{r_}, v{r_}, v{d}')
        for i in range(4): k(f'v_sub_f32 v{NM+ti*4+i}, v{NM+ti*4+i}, v{d}')
    k(f's_cmp_lg_u32 s{sClamp}, 0')
    k(f's_cbranch_scc1 {lab}_norescale')
    for ti in range(3):
        k(f'v_exp_f32 v{T+ti}, -v{T+ti}')
    def scale(areg, fac):
        k(f'v_accvgpr_read_b32 v{T+3}, a{areg}')
        k(f'v_mul_f32 v{T+3}, v{T+3}, v{fac}')
        k(f'v_accvgpr_write_b32 a{areg}, v{T+3}')
    for t in range(8):
        for qt in range(2):
            for i in range(4): scale(Oown(t, qt) + i, T + qt)
        for i in range(4): scale(Osh(t) + i, T + 2)
    for ti in range(3):
        for i in range(4): scale(AL + ti*4 + i, T + ti)
    k.label(f'{lab}_norescale')
    exp_code(k, with_or=False)
    k(f's_branch {lab}_after')

def at_loop(k, w):
    lab = f'L_w{w}'
    k(f's_mov_b32 s{sJ}, 0')
    k(f's_mov_b32 s{sKs}, 0')
    k(f's_mov_b32 s{sVs}, {SLOT}')
    k(f's_mov_b32 s{sPrevV}, {4*SLOT}')
    k(f's_mov_b32 s{sTile}, {2*16384}')
    k(f's_add_u32 s{sTile}, s{sTile}, s{sM0b}')
    k('s_waitcnt vmcnt(12) lgkmcnt(0)')
    k('s_barrier')
    k.label(f'{lab}_loop')
    k(f's_cmp_ge_u32 s{sJ}, 6')
    k(f's_cbranch_scc1 {lab}_nodma1')
    k(f's_add_u32 m0, s{sPrevV}, s{sM0b}')
    k('s_nop 0')
    for il in range(4):
        k(f'buffer_load_dwordx4 v{VD + (il&1)}, {s(sK,4)}, s{sTile} offen offset:{il*1024} nt lds')
    k.label(f'{lab}_nodma1')
    qk_code(k, w)
    k(f's_cmp_eq_u32 s{sJ}, 0')
    k(f's_cbranch_scc1 {lab}_first')
    exp_code(k)
    k(f'v_and_b32 v{T}, s{sMask}, v{T}')
    k(f'v_cmp_ne_u32 vcc, 0, v{T}')
    k(f's_cbranch_vccnz {lab}_rare')
    k.label(f'{lab}_after')
    k(f's_cmp_lt_u32 s{sJ}, 6'); k(f's_cbranch_scc1 {lab}_wa')
    k(f's_cmp_eq_u32 s{sJ}, 6'); k(f's_cbranch_scc1 {lab}_wb')
    k('s_waitcnt vmcnt(0)'); k(f's_branch {lab}_wc')
    k.label(f'{lab}_wb'); k('s_waitcnt vmcnt(8)'); k(f's_branch {lab}_wc')
    k.label(f'{lab}_wa'); k('s_waitcnt vmcnt(12)')
    k.label(f'{lab}_wc')
    k('s_waitcnt lgkmcnt(0)')
    k('s_barrier')
    k(f's_cmp_ge_u32 s{sJ}, 6')
    k(f's_cbranch_scc1 {lab}_nodma2')
    k(f's_add_u32 m0, s{sKs}, s{sM0b}')
    k('s_nop 0')
    for il in range(4):
        k(f'buffer_load_dwordx4 v{VD + (il&1)}, {s(sV,4)}, s{sTile} offen offset:{il*1024} nt lds')
    k.label(f'{lab}_nodma2')
    k(f's_add_u32 s{sT0}, s{sKs}, {2*SLOT}')
    k(f's_cmp_ge_u32 s{sT0}, {NSLOT*SLOT}')
    k(f's_cselect_b32 s{sT1}, {NSLOT*SLOT}, 0')
    k(f's_sub_u32 s{sT0}, s{sT0}, s{sT1}')
    k(f's_sub_u32 s{sD}, s{sT0}, s{sKs}')
    k(f's_mov_b32 s{sKs}, s{sT0}')
    for si in range(4): k(f'v_add_u32 v{AK+si}, s{sD}, v{AK+si}')
    pv_code(k, w)
    k(f's_mov_b32 s{sPrevV}, s{sVs}')
    k(f's_add_u32 s{sT0}, s{sVs}, {2*SLOT}')
    k(f's_cmp_ge_u32 s{sT0}, {NSLOT*SLOT}')
    k(f's_cselect_b32 s{sT1}, {NSLOT*SLOT}, 0')
    k(f's_sub_u32 s{sT0}, s{sT0}, s{sT1}')
    k(f's_sub_u32 s{sD}, s{sT0}, s{sVs}')
    k(f's_mov_b32 s{sVs}, s{sT0}')
    add_av(k, sD)
    k(f's_add_u32 s{sTile}, s{sTile}, 16384')
    k(f's_cmp_lt_u32 s{sJ}, 6'); k(f's_cbranch_scc1 {lab}_wd')
    k('s_waitcnt vmcnt(4)'); k(f's_branch {lab}_we')
    k.label(f'{lab}_wd'); k('s_waitcnt vmcnt(12)')
    k.label(f'{lab}_we')
    k('s_waitcnt lgkmcnt(0)')
    k('s_barrier')
    k(f's_add_u32 s{sJ}, s{sJ}, 1')
    k(f's_cmp_lt_u32 s{sJ}, 8')
    k(f's_cbranch_scc1 {lab}_loop')

def at_epilogue(k, w, store_flags=''):
    k('s_nop 7')
    k('v_lshlrev_b32 v0, 4, v1')
    for qt in range(2):
        k(f'v_accvgpr_read_b32 v{T+qt}, a{AL+qt*4}')
    k(f'v_accvgpr_read_b32 v{T+2}, a{AL+8}')
    k('v_lshlrev_b32 v3, 2, v1')
    k(f'ds_write_b32 v3, v{NM+8} offset:{w*256}')
    k(f'ds_write_b32 v3, v{T+2} offset:{1024 + w*256}')
    for qt in range(2):
        k(f'v_rcp_f32 v{T+qt}, v{T+qt}')
    k('s_waitcnt lgkmcnt(0)')
    k('s_barrier')
    for ww in range(4):
        k(f'ds_read_b32 v{NM+ww}, v3 offset:{ww*256}')
        k(f'ds_read_b32 v{NM+4+ww}, v3 offset:{1024 + ww*256}')
    F = FR
    cnt = 0
    for qt in range(2):
        for p in range(4):
            f = F + (cnt % 3) * 8; cnt += 1
            for i in range(4):
                k(f'v_accvgpr_read_b32 v{f+i}, a{Oown(2*p, qt)+i}')
                k(f'v_accvgpr_read_b32 v{f+4+i}, a{Oown(2*p+1, qt)+i}')
            for i in range(8):
                k(f'v_mul_f32 v{f+i}, v{f+i}, v{T+qt}')
            for i in range(4):
                k(f'v_cvt_pk_bf16_f32 v{f+i}, v{f+2*i}, v{f+2*i+1}')
            off = ((2*w + qt) * 4 + ((p + w) & 3)) * 1024
            k(f's_mov_b32 s{sT0}, {off}')
            k(f'buffer_store_dwordx4 {v(f,4)}, v0, {s(sO,4)}, s{sT0} offen {store_flags}')
    k(f'v_min_f32 v{T}, v{NM}, v{NM+1}')
    k(f'v_min3_f32 v{T}, v{T}, v{NM+2}, v{NM+3}')
    for ww in range(4):
        k(f'v_sub_f32 v{NM+ww}, v{T}, v{NM+ww}')
    for ww in range(4):
        k(f'v_exp_f32 v{NM+ww}, v{NM+ww}')
    k('s_nop 0')
    k(f'v_mul_f32 v{T+1}, v{NM}, v{NM+4}')
    for ww in range(1, 4):
        k(f'v_fmac_f32 v{T+1}, v{NM+ww}, v{NM+4+ww}')
    k(f'v_rcp_f32 v{T+1}, v{T+1}')
    k('s_nop 0')
    k(f'v_mul_f32 v{T+1}, v{T+1}, v{NM+w}')
    k(f'v_add_u32 v3, {4096 + w*8192}, v0')
    for t in range(8):
        f = S0 + (t % 4) * 4
        for i in range(4):
            k(f'v_accvgpr_read_b32 v{f+i}, a{Osh(t)+i}')
        for i in range(4):
            k(f'v_mul_f32 v{f+i}, v{f+i}, v{T+1}')
        k(f'ds_write_b128 v3, {v(f,4)} offset:{((t + 2*w) & 7) * 1024}')
    k('s_waitcnt lgkmcnt(0)')
    k('s_barrier')
    k(f'v_add_u32 v3, 4096, v0')
    for ww in range(4):
        for h in range(2):
            k(f'ds_read_b128 {v(S0 + (ww*2+h)*4, 4)}, v3 offset:{ww*8192 + (2*w+h)*1024}')
    for h in range(2):
        for i in range(4):
            r0 = S0 + h*4 + i
            k(f'v_add_f32 v{r0}, v{r0}, v{r0+8}')
            k(f'v_add_f32 v{r0+16}, v{r0+16}, v{r0+24}')
            k(f'v_add_f32 v{r0}, v{r0}, v{r0+16}')
    for i in range(4):
        k(f'v_cvt_pk_bf16_f32 v{S0+i}, v{S0+2*i}, v{S0+2*i+1}')
    k(f's_mov_b32 s{sT0}, {(8*4 + w) * 1024}')
    k(f'buffer_store_dwordx4 {v(S0,4)}, v0, {s(sO,4)}, s{sT0} offen {store_flags}')

def build(nwg=512, store_flags=''):
    k = Prog()
    prologue(k, nwg)
    qp_phase(k)
    k('s_waitcnt lgkmcnt(0)')
    for w in range(1, 4):
        k(f's_cmp_eq_u32 s{sW_}, {w}')
        k(f's_cbranch_scc1 L_wave{w}')
    for w in range(4):
        k.label(f'L_wave{w}')
        k.reset_state()
        at_loop(k, w)
        at_epilogue(k, w, store_flags)
        k('s_waitcnt vmcnt(0)')
        k('s_endpgm')
        rare_code(k, w, f'L_w{w}')
    k.label('L_end')
    k('s_endpgm')
    k.finish()
    return k

if __name__ == '__main__':
    k = build()
    print(k.count())
    open('k1_body.s', 'w').write(k.text())
```

```python
from asmgen import *
from k1 import v, a, s
SLOT = 16384
POFF = 512 * 36864

def build_k2(nslot=8):
    k = Prog()
    AV = 4; OD = 12; LV = 14; FR = 16
    ACC = 0; BB = 96
    sWo, sO, sP = 24, 28, 32
    sW_ = 3; sM0b = 40; sT0 = 41; sB = 44; sD = 48; sWb = 49
    k('s_cmp_ge_u32 s2, 240'); k('s_cbranch_scc1 L2_end')
    k('s_load_dwordx2 s[8:9], s[0:1], 32'); k('s_load_dwordx2 s[10:11], s[0:1], 72'); k('s_load_dwordx2 s[4:5], s[0:1], 96')
    k('v_and_b32 v1, 63, v0'); k('v_lshrrev_b32 v3, 6, v0'); k('s_nop 0'); k(f'v_readfirstlane_b32 s{sW_}, v3')
    k('s_and_b32 s60, s2, 7'); k('s_lshr_b32 s61, s2, 3')
    k('s_lshr_b32 s62, s60, 2'); k('s_and_b32 s63, s60, 3')
    k('s_mul_i32 s64, s61, 52'); k('s_lshr_b32 s64, s64, 8')
    k('s_mul_i32 s65, s64, 5'); k('s_sub_u32 s65, s61, s65')
    k('s_waitcnt lgkmcnt(0)')
    k('s_cmp_eq_u32 s62, 0'); k('s_cselect_b32 s8, s8, s10'); k('s_cselect_b32 s9, s9, s11')
    k(f's_mul_i32 s66, s63, {1024*1280}'); k('s_lshl_b32 s67, s65, 8'); k('s_add_u32 s66, s66, s67')
    k(f's_add_u32 s{sWo}, s8, s66'); k(f's_addc_u32 s{sWo+1}, s9, 0')
    k(f's_sub_u32 s{sWo+2}, {4096*1280}, s66'); k(f's_mov_b32 s{sWo+3}, 0x20000')
    k(f's_mov_b32 s{sO}, s4'); k(f's_mov_b32 s{sO+1}, s5'); k(f's_mov_b32 s{sO+2}, {POFF}'); k(f's_mov_b32 s{sO+3}, 0x20000')
    k('s_mul_i32 s66, s60, 30'); k('s_add_u32 s66, s66, s61'); k('s_lshl_b32 s66, s66, 2'); k(f's_add_u32 s66, s66, s{sW_}')
    k('s_mul_i32 s66, s66, 24576'); k(f's_add_u32 s66, s66, {POFF}')
    k(f's_add_u32 s{sP}, s4, s66'); k(f's_addc_u32 s{sP+1}, s5, 0'); k(f's_mov_b32 s{sP+2}, 24576'); k(f's_mov_b32 s{sP+3}, 0x20000')
    k(f's_lshl_b32 s{sM0b}, s{sW_}, 12')
    k('s_mul_i32 s66, s64, 12'); k(f's_mul_i32 s67, s{sW_}, 3'); k('s_add_u32 s66, s66, s67')
    for i in range(3):
        k(f's_add_u32 s67, s66, {i}')
        k('s_mul_i32 s68, s67, 57'); k('s_lshr_b32 s68, s68, 9')
        k('s_mul_i32 s69, s68, 9'); k('s_sub_u32 s69, s67, s69')
        k('s_lshl_b32 s70, s62, 3'); k('s_add_u32 s70, s70, s68'); k('s_lshl_b32 s70, s70, 5')
        k('s_lshl_b32 s71, s63, 3'); k('s_add_u32 s70, s70, s71'); k('s_mul_i32 s70, s70, 36864')
        k('s_lshl_b32 s69, s69, 12'); k(f's_add_u32 s{sB+i}, s70, s69')
    k(f's_mul_i32 s{sWb}, s{sW_}, {16*1280}')
    k('v_and_b32 v20, 15, v1'); k('v_lshrrev_b32 v21, 4, v1'); k('v_bfe_u32 v22, v1, 2, 2'); k('v_and_b32 v23, 3, v1')
    k('v_lshlrev_b32 v3, 1, v21'); k('v_xor_b32 v3, v20, v3'); k('v_lshlrev_b32 v3, 4, v3')
    k('v_mul_u32_u24 v2, 1280, v21'); k(f'v_add_u32 v{OD}, v2, v3'); k(f'v_xor_b32 v{OD+1}, 128, v{OD}')
    k(f'v_lshlrev_b32 v{LV}, 4, v1')
    k('v_lshl_add_u32 v3, v21, 2, v22'); k('v_lshlrev_b32 v0, 8, v3'); k('v_lshl_add_u32 v0, v23, 3, v0'); k('v_and_b32 v3, 7, v3')
    for t in range(8):
        k(f'v_xor_b32 v{AV+t}, {t}, v3'); k(f'v_lshl_add_u32 v{AV+t}, v{AV+t}, 5, v0')
    NST = 16
    def dma(st):
        slot = st % nslot
        k(f's_add_u32 m0, s{sM0b}, {slot*SLOT}')
        for il in range(4):
            k(f's_add_u32 s{sT0}, s{sWb}, {(64*st + 4*il)*1280 - il*1024}')
            k(f'buffer_load_dwordx4 v{OD + (il&1)}, {s(sWo,4)}, s{sT0} offen offset:{il*1024} lds', tag=f'tile{st}')
    def bloads(st):
        b = BB + (st % 4) * 24
        for ks in range(2):
            ksg = 2*st + ks; hh = ksg >> 2; p = ksg & 3
            for i in range(3):
                k(f's_add_u32 s{sT0}, s{sB+i}, {hh*36864}')
                k(f'buffer_load_dwordx4 {a(b + (ks*3+i)*4, 4)}, v{LV}, {s(sO,4)}, s{sT0} offen offset:{p*1024}')
    la = nslot - 1
    for st in range(min(la, 5)): dma(st)
    for st in range(4): bloads(st)
    for st in range(5, la): dma(st)
    for st in range(NST):
        k.wait_tag(f'tile{st}', lgkm0=True)
        k('s_barrier')
        if st + la < NST: dma(st + la)
        bb = BB + (st % 4) * 24
        items = []; fi = 0; nfr = 6
        so = (st % nslot) * SLOT
        for ks in range(2):
            for t in range(8):
                f = FR + (fi % nfr) * 4; fi += 1
                o = so + ks*8192
                rd = []
                if o + 4096 <= 65535:
                    rd = [f'ds_read_b64_tr_b16 {v(f,2)}, v{AV+t} offset:{o}', f'ds_read_b64_tr_b16 {v(f+2,2)}, v{AV+t} offset:{o+4096}']
                else:
                    rd = [f'ds_read_b64_tr_b16 {v(f,2)}, v{40+t} offset:{o-65536}', f'ds_read_b64_tr_b16 {v(f+2,2)}, v{40+t} offset:{o-65536+4096}']
                m = []
                for i in range(3):
                    acc = ACC + (i*8 + t)*4
                    c = a(acc,4) if not (st == 0 and ks == 0) else '0'
                    m.append(f'v_mfma_f32_16x16x32_bf16 {a(acc,4)}, {v(f,4)}, {a(bb + (ks*3+i)*4, 4)}, {c}')
                items.append((rd, m))
        if st == 0:
            for t in range(8): k(f'v_add_u32 v{40+t}, 0x10000, v{AV+t}')
        ahead = nfr - 1
        for i in range(ahead):
            for r_ in items[i][0]: k(r_)
        for i, (rd, m) in enumerate(items):
            if i + ahead < len(items):
                for r_ in items[i + ahead][0]: k(r_)
            for m_ in m: k(m_)
        if st + 4 < NST: bloads(st + 4)
    k('s_nop 7')
    for i in range(24):
        k(f's_mov_b32 s{sT0}, {i*1024}')
        k(f'buffer_store_dwordx4 {a(ACC + i*4, 4)}, v{LV}, {s(sP,4)}, s{sT0} offen')
    k('s_waitcnt vmcnt(0)')
    k.label('L2_end')
    k('s_endpgm')
    k.finish()
    return k

def build_k3():
    k = Prog()
    k('s_cmp_ge_u32 s2, 180'); k('s_cbranch_scc1 L3_end')
    k('s_load_dwordx2 s[4:5], s[0:1], 96'); k('s_load_dwordx2 s[6:7], s[0:1], 80')
    k('v_and_b32 v1, 63, v0'); k('v_lshrrev_b32 v3, 6, v0'); k('s_nop 0'); k('v_readfirstlane_b32 s3, v3')
    k('s_lshl_b32 s20, s2, 2'); k('s_add_u32 s20, s20, s3')
    k('s_cmp_ge_u32 s20, 360'); k('s_cselect_b32 s21, 1, 0'); k('s_cselect_b32 s22, 360, 0'); k('s_sub_u32 s20, s20, s22')
    k('s_mul_i32 s23, s20, 5462'); k('s_lshr_b32 s23, s23, 16')
    k('s_mul_i32 s24, s23, 12'); k('s_sub_u32 s24, s20, s24')
    k('s_mul_i32 s25, s23, 52'); k('s_lshr_b32 s25, s25, 8')
    k('s_mul_i32 s26, s25, 5'); k('s_sub_u32 s26, s23, s26')
    k('s_mul_i32 s27, s21, 120'); k('s_add_u32 s27, s27, s23'); k(f's_mul_i32 s27, s27, {4*24576}')
    k('s_lshl_b32 s28, s24, 13'); k('s_add_u32 s27, s27, s28'); k(f's_add_u32 s27, s27, {POFF}')
    k('s_waitcnt lgkmcnt(0)')
    k('s_add_u32 s8, s4, s27'); k('s_addc_u32 s9, s5, 0'); k(f's_mov_b32 s10, {3*30*4*24576 + 8192}'); k('s_mov_b32 s11, 0x20000')
    k('s_mov_b32 s12, s6'); k('s_mov_b32 s13, s7'); k(f's_mov_b32 s14, {8*144*1280*2}'); k('s_mov_b32 s15, 0x20000')
    k('v_lshlrev_b32 v2, 4, v1')
    for hg in range(4):
        for nt in range(8):
            k(f's_mov_b32 s30, {hg*30*4*24576 + (nt>>2)*4096}')
            k(f'buffer_load_dwordx4 {v(16 + (hg*8+nt)*4, 4)}, v2, s[8:11], s30 offen offset:{(nt&3)*1024}')
    k('s_mul_i32 s31, s25, 12'); k('s_add_u32 s31, s31, s24'); k(f's_mul_i32 s31, s31, {16*2560}')
    k('s_mul_i32 s32, s21, 1280'); k('s_add_u32 s31, s31, s32'); k('s_lshl_b32 s32, s26, 8'); k('s_add_u32 s31, s31, s32')
    k('v_and_b32 v3, 15, v1'); k('v_mul_u32_u24 v3, 2560, v3'); k('v_lshrrev_b32 v4, 4, v1'); k('v_lshl_add_u32 v3, v4, 3, v3')
    for nt in range(8):
        b = 16 + nt*4
        for i in range(4):
            k(f'v_add_f32 v{b+i}, v{b+i}, v{b+32+i}')
            k(f'v_add_f32 v{b+64+i}, v{b+64+i}, v{b+96+i}')
            k(f'v_add_f32 v{b+i}, v{b+i}, v{b+64+i}')
        k(f'v_cvt_pk_bf16_f32 v{b}, v{b}, v{b+1}'); k(f'v_cvt_pk_bf16_f32 v{b+1}, v{b+2}, v{b+3}')
        k(f'buffer_store_dwordx2 {v(b,2)}, v3, s[12:15], s31 offen offset:{nt*32}')
    k('s_waitcnt vmcnt(0)')
    k.label('L3_end')
    k('s_endpgm')
    k.finish()
    return k
```

```python
import sys
from k1 import build as build_k1
from k23 import *
NAME = "concat_heads__mha_block_cached__mha_block_cached__near_ridge"
HDR = open('cdna_kernels/' + NAME + '.s.ref').read().split('; Override launch')[0]
def kd(name, vg, ag, sg):
    return f""".amdhsa_kernel {name}
  .amdhsa_next_free_vgpr {vg+ag}
  .amdhsa_next_free_sgpr {sg}
  .amdhsa_accum_offset {vg}
  .amdhsa_group_segment_fixed_size 0
  .amdhsa_kernarg_size 104
  .amdhsa_user_sgpr_count 2
  .amdhsa_user_sgpr_kernarg_segment_ptr 1
  .amdhsa_system_sgpr_workgroup_id_x 1
.end_amdhsa_kernel
"""
def kern(name, body):
    return f".globl {name}\n.p2align 8\n.type {name},@function\n{name}:\n{body}\n"
def main(out, only=None):
    k1 = build_k1(); k2 = build_k2(); k3 = build_k3()
    t = HDR
    launches = [("attn_kernel", 512, 256, 81920), ("oproj_kernel", 240, 256, 131072), ("reduce_kernel", 180, 256, 0)]
    if only: launches = launches[:only]
    for n, g, b, l in launches:
        t += f"; @launch kernel={n} grid=({g},1,1) block=({b},1,1) lds={l}\n"
    t += '.amdgcn_target "amdgcn-amd-amdhsa--gfx950"\n.text\n'
    t += kern("attn_kernel", k1.text()) + kern("oproj_kernel", k2.text()) + kern("reduce_kernel", k3.text())
    t += '.section .rodata,"a"\n.p2align 6\n' + kd("attn_kernel", 96, 160, 80) + '.p2align 6\n' + kd("oproj_kernel", 64, 192, 80) + '.p2align 6\n' + kd("reduce_kernel", 144, 0, 48)
    open(out, 'w').write(t)
    print(len(t), "bytes;", k1.count(), k2.count(), k3.count())
if __name__ == '__main__':
    main(sys.argv[1] if len(sys.argv) > 1 else 'cdna_kernels/' + NAME + '.s')
```

```python
import re

REG_RE = re.compile(r'^(v|a|s)(\d+)$|^(v|a|s)\[(\d+):(\d+)\]$')

def regs_of(tok):
    tok = tok.strip()
    neg = tok.lstrip('-')
    m = re.match(r'^abs\((.*)\)$', neg)
    if m: neg = m.group(1)
    m = re.match(r'^\|(.*)\|$', neg)
    if m: neg = m.group(1)
    m = REG_RE.match(neg)
    if m:
        if m.group(1):
            return [(m.group(1), int(m.group(2)))]
        return [(m.group(3), i) for i in range(int(m.group(4)), int(m.group(5)) + 1)]
    if neg == 'vcc': return [('s', 106), ('s', 107)]
    if neg == 'vcc_lo': return [('s', 106)]
    if neg == 'vcc_hi': return [('s', 107)]
    if neg == 'exec': return [('s', 126), ('s', 127)]
    if neg == 'm0': return [('s', 124)]
    return []

TRANS = ('v_exp_f32', 'v_log_f32', 'v_rcp_f32', 'v_rsq_f32', 'v_sqrt_f32', 'v_sin_f32', 'v_cos_f32')
S_NODST = ('s_cmp', 's_cbranch', 's_waitcnt', 's_barrier', 's_nop', 's_branch', 's_setprio', 's_endpgm', 's_sleep', 's_bitcmp', 's_setreg', 's_sethalt')

class Ins:
    __slots__ = ('text', 'op', 'kind', 'dst', 'src', 'srcA', 'srcB', 'srcC', 'tag', 'passes', 'wide', 'lds', 'nowait', 'comment')
    def __init__(self, text, tag=None):
        self.text = text
        self.tag = tag
        self.nowait = False
        body = text.split(';')[0].strip()
        parts = body.split(None, 1)
        self.op = parts[0]
        rest = parts[1] if len(parts) > 1 else ''
        ops = []
        cur = ''; depth = 0
        for ch in rest:
            if ch in '[(': depth += 1
            if ch in '])': depth -= 1
            if ch == ',' and depth == 0:
                ops.append(cur.strip()); cur = ''
            else:
                cur += ch
        if cur.strip(): ops.append(cur.strip())
        mods = ''
        if ops:
            last = ops[-1].split(None, 1)
            ops[-1] = last[0]
            if len(last) > 1: mods = last[1]
        op = self.op
        self.dst = []; self.src = []; self.srcA = []; self.srcB = []; self.srcC = []
        self.passes = 0; self.wide = False; self.lds = False
        R = lambda i: regs_of(ops[i]) if i < len(ops) else []
        if op.startswith('v_mfma'):
            self.kind = 'mfma'
            self.dst = R(0); self.srcA = R(1); self.srcB = R(2); self.srcC = R(3)
            self.src = self.srcA + self.srcB + self.srcC
            self.passes = 8 if '32x32' in op else 4
        elif op.startswith('ds_read') or op.startswith('ds_bpermute') or op.startswith('ds_swizzle') or op.startswith('ds_permute'):
            self.kind = 'dsr'
            self.dst = R(0); self.src = [r for i in range(1, len(ops)) for r in R(i)]
        elif op.startswith('ds_write'):
            self.kind = 'dsw'
            self.src = [r for i in range(len(ops)) for r in R(i)]
        elif op.startswith('ds_add') :
            self.kind = 'dsw'
            self.src = [r for i in range(len(ops)) for r in R(i)]
        elif op.startswith('buffer_load') or op.startswith('global_load') :
            allmods = (mods + ' ' + ' '.join(ops[-1:])).split()
            if 'lds' in mods.split() or op.startswith('global_load_lds'):
                self.kind = 'dma'; self.lds = True
                self.src = [r for i in range(len(ops)) for r in R(i)] + [('s', 124)]
            else:
                self.kind = 'vld'
                self.dst = R(0); self.src = [r for i in range(1, len(ops)) for r in R(i)]
        elif op.startswith('buffer_store') or op.startswith('global_store'):
            self.kind = 'vst'
            self.src = [r for i in range(len(ops)) for r in R(i)]
            self.wide = ('x4' in op or 'x3' in op)
            if self.wide:
                self.srcA = R(0) if op.startswith('buffer') else R(1)
        elif op.startswith('buffer_atomic') or op.startswith('global_atomic'):
            self.kind = 'vat'
            ret = 'sc0' in mods.split()
            if ret:
                self.dst = R(0)
                self.src = [r for i in range(1 if op.startswith('global') else 0, len(ops)) for r in R(i)]
            else:
                self.src = [r for i in range(len(ops)) for r in R(i)]
        elif op.startswith('buffer_inv') or op.startswith('buffer_wbl2'):
            self.kind = 'vst'
        elif op.startswith('s_load') or op.startswith('s_memtime') or op.startswith('s_memrealtime') or op.startswith('s_buffer_load'):
            self.kind = 'smem'
            self.dst = R(0); self.src = [r for i in range(1, len(ops)) for r in R(i)]
        elif op.startswith('s_'):
            self.kind = 'salu'
            if any(op.startswith(p) for p in S_NODST):
                self.src = [r for i in range(len(ops)) for r in R(i)]
            else:
                self.dst = R(0); self.src = [r for i in range(1, len(ops)) for r in R(i)]
                if 'saveexec' in op:
                    self.dst = self.dst + [('s', 126), ('s', 127)]
                if op.startswith('s_addk') or op.startswith('s_mulk'):
                    self.src = self.src + self.dst
            if op == 's_waitcnt': self.kind = 'wait'
            if op == 's_nop': self.kind = 'nop'
            if op == 's_barrier': self.kind = 'barrier'
            if op.startswith('s_cbranch') or op == 's_branch': self.kind = 'branch'
        elif op.startswith('v_'):
            self.kind = 'valu'
            base = re.sub(r'_(e32|e64|dpp|sdwa)$', '', op)
            if base in TRANS: self.kind = 'trans'
            if op.startswith('v_permlane') and 'swap' in op:
                self.dst = R(0) + R(1); self.src = R(0) + R(1)
            elif op.startswith('v_cmp'):
                self.dst = R(0); self.src = [r for i in range(1, len(ops)) for r in R(i)]
            elif op.startswith('v_add_co') or op.startswith('v_sub_co') or op.startswith('v_addc_co') or op.startswith('v_subb_co'):
                self.dst = R(0) + R(1); self.src = [r for i in range(2, len(ops)) for r in R(i)]
            else:
                self.dst = R(0); self.src = [r for i in range(1, len(ops)) for r in R(i)]
                if base.startswith('v_fmac') or base.startswith('v_pk_fmac') or base.startswith('v_writelane') or 'dpp' in op:
                    self.src = self.src + self.dst
                if base.startswith('v_cndmask') and len(ops) == 3:
                    self.src = self.src + [('s', 106), ('s', 107)]
        else:
            raise ValueError("unknown instruction: " + text)

    def states(self):
        if self.kind == 'nop':
            return int(self.text.split()[1], 0) + 1
        return 1

def is_valu(i): return i.kind in ('valu', 'trans')

def needed_gap(p, c):
    need = 0
    pd = set(p.dst);
    if is_valu(p):
        pv = {r for r in pd if r[0] in 'va'}
        ps = {r for r in pd if r[0] == 's'}
        if c.kind == 'mfma' and pv & set(c.src): need = max(need, 2)
        if p.kind == 'trans' and c.kind == 'valu' and pv & set(c.src): need = max(need, 1)
        if p.kind == 'trans' and c.kind in ('mfma',) and pv & set(c.src): need = max(need, 2)
        if is_valu(c) and (c.op.startswith('v_readfirstlane') or c.op.startswith('v_readlane')) and pv & set(c.src): need = max(need, 1)
        if is_valu(c) and c.op.startswith('v_permlane') and pv & set(c.src): need = max(need, 2)
        if is_valu(c) and 'dpp' in c.text and pv & set(c.src): need = max(need, 2)
        if ps:
            if is_valu(c) and ps & set(c.src):
                need = max(need, 4 if (c.op.startswith('v_readlane') or c.op.startswith('v_writelane')) else 2)
            if c.kind in ('vld', 'vst', 'dma', 'vat') and ps & set(c.src): need = max(need, 5)
            if c.kind == 'mfma' and (('s',126) in ps or ('s',127) in ps): need = max(need, 4)
    if p.kind == 'mfma':
        big = p.passes == 8
        raw = 12 if big else 8
        ovl = 10 if big else 6
        war = 7 if big else 3
        if is_valu(c) and (pd & set(c.src) or pd & set(c.dst)): need = max(need, raw)
        if c.kind in ('dsr', 'dsw', 'vld', 'vst', 'vat', 'dma') and (pd & set(c.src) or pd & set(c.dst)): need = max(need, raw)
        if c.kind == 'mfma':
            if pd & (set(c.srcA) | set(c.srcB)): need = max(need, raw)
            if pd & set(c.srcC):
                if not (c.srcC == p.dst and c.passes == p.passes): need = max(need, ovl)
            if pd & set(c.dst) and not (c.dst == p.dst):
                need = max(need, ovl)
        if is_valu(c) and set(p.srcC) & set(c.dst): need = max(need, war)
    if p.kind == 'salu' and ('s', 124) in pd and c.kind == 'dma': need = max(need, 1)
    if p.kind == 'vst' and p.wide:
        data = set(p.srcA)
        if data & set(c.dst):
            need = max(need, 2 if is_valu(c) else 1)
    return need

class Prog:
    def __init__(self):
        self.items = []
    def __call__(self, text, tag=None):
        for line in text.split('\n'):
            line = line.strip()
            if not line or line.startswith(';'):
                continue
            self.items.append(Ins(line, tag))
    def label(self, name, keep=False, loop=False):
        self.items.append(('label', name, keep or loop, loop))
    def branch(self, text, keep=False):
        ins = Ins(text); ins.nowait = keep; self.items.append(ins)
    def raw(self, text): self.items.append(('raw', text))
    def comment(self, text): self.items.append(('raw', '; ' + text))
    def wait_tag(self, tag, lgkm0=False):
        self.items.append(('waittag', (tag, lgkm0)))
    def reset_state(self):
        self.items.append(('reset', None))
    def extend(self, other): self.items.extend(other.items)

    def insert_waits(self):
        out = []
        lg = []
        vm = []
        vt = []
        smem = False
        loopstate = {}
        def emit_wait(vmn=None, lgn=None):
            s = 's_waitcnt'
            if vmn is not None: s += f' vmcnt({min(vmn,63)})'
            if lgn is not None: s += f' lgkmcnt({min(lgn,15)})'
            out.append(Ins(s))
        for it in self.items:
            if not isinstance(it, Ins):
                if it[0] == 'reset':
                    lg = []; vm = []; vt = []
                    continue
                if it[0] == 'waittag':
                    tag, lgkm0 = it[1]
                    idx = max([i for i, t in enumerate(vt) if t == tag], default=None)
                    n = None
                    if idx is not None:
                        n = len(vm) - 1 - idx
                        assert n <= 63, "vmcnt overflow"
                        vm = vm[len(vm) - n:] if n > 0 else []
                        vt = vt[len(vt) - n:] if n > 0 else []
                    if n is not None or lgkm0:
                        emit_wait(n, 0 if lgkm0 else None)
                        if lgkm0: lg = []
                    continue
                if it[0] == 'label':
                    keep = len(it) > 2 and it[2]
                    if len(it) > 3 and it[3]:
                        loopstate[it[1]] = ([frozenset(x) if x else None for x in lg], [frozenset(x) if x else None for x in vm if x])
                    if not keep:
                        pend = [x for x in lg if x] + [x for x in vm if x]
                        if pend:
                            raise RuntimeError(f"pending register loads at label {it[1]}: {pend[:3]}")
                        lg = []; vm = []; vt = []
                out.append(it); continue
            if it.kind == 'wait':
                m = re.search(r'vmcnt\((\d+)\)', it.text)
                if m:
                    n = int(m.group(1))
                    if len(vm) > n:
                        vm = vm[len(vm) - n:] if n > 0 else []
                        vt = vt[len(vt) - n:] if n > 0 else []
                m = re.search(r'lgkmcnt\((\d+)\)', it.text)
                if m:
                    n = int(m.group(1))
                    if len(lg) > n: lg = lg[len(lg) - n:] if n > 0 else []
                out.append(it); continue
            touched = set(it.src) | set(it.dst)
            need_lg = None; need_vm = None
            for idx, d in enumerate(lg):
                if d and (d & touched): need_lg = len(lg) - 1 - idx
            for idx, d in enumerate(vm):
                if d and (d & touched): need_vm = len(vm) - 1 - idx
            if it.kind == 'branch':
                pend = [x for x in lg if x] + [x for x in vm if x]
                tgt = it.text.split()[1]
                if tgt in loopstate:
                    cur = [frozenset(x) if x else None for x in lg]
                    ref = loopstate[tgt][0]
                    if cur != ref[len(ref) - len(cur):] and cur != ref:
                        raise RuntimeError(f"loop state mismatch at {it.text}: {cur} vs {ref}")
                elif pend and not it.nowait:
                    raise RuntimeError(f"pending register loads at branch {it.text}: {pend[:3]}")
            if need_lg is not None and isinstance(it.tag, tuple) and it.tag[0] == 'merge':
                need_lg = max(0, need_lg - it.tag[1])
            if need_lg is not None or need_vm is not None:
                emit_wait(need_vm, need_lg)
                if need_lg is not None:
                    n = min(need_lg, 15); lg = lg[len(lg) - n:] if n > 0 else []
                if need_vm is not None:
                    n = min(need_vm, 63); vm = vm[len(vm) - n:] if n > 0 else []; vt = vt[len(vt) - n:] if n > 0 else []
            out.append(it)
            if it.kind == 'smem' and it.op.startswith('s_mem'): lg.append(None); lg.append(None)
            if it.kind == 'dsr': lg.append(set(it.dst))
            elif it.kind == 'dsw': lg.append(None)
            elif it.kind == 'vld': vm.append(None if (isinstance(it.tag, str) and (it.tag == 'notrack' or it.tag.startswith('nt:'))) else set(it.dst)); vt.append(it.tag)
            elif it.kind == 'vat': vm.append(set(it.dst) if it.dst else None); vt.append(it.tag)
            elif it.kind in ('vst', 'dma'): vm.append(None); vt.append(it.tag)
            if len(vm) > 63: raise RuntimeError("more than 63 VMEM ops outstanding in model at: " + it.text)
        self.items = out

    def insert_nops(self, window=24):
        out = []
        hist = []
        def gap_needed(c, hist):
            need = 0; dist = 0
            for p in reversed(hist):
                g = needed_gap(p, c)
                if g > dist: need = max(need, g - dist)
                dist += p.states()
                if dist >= 16: break
            return need
        for it in self.items:
            if not isinstance(it, Ins):
                out.append(it); continue
            n = gap_needed(it, hist)
            while n > 0:
                k = min(n, 8)
                nop = Ins(f's_nop {k-1}')
                out.append(nop); hist.append(nop); n -= k
            out.append(it); hist.append(it)
            hist = hist[-window:]
        self.items = out
        labels = {}
        lin = []
        for it in self.items:
            if isinstance(it, Ins): lin.append(it)
            elif it[0] == 'label': labels[it[1]] = len(lin)
        for i, ins in enumerate(lin):
            if ins.kind == 'branch':
                tgt = ins.text.split()[1]
                if tgt not in labels: continue
                h = lin[max(0, i - window): i + 1]
                j = labels[tgt]
                hh = list(h)
                for c in lin[j:j + 16]:
                    n = gap_needed(c, hh)
                    if n > 0:
                        raise RuntimeError(f"hazard across branch {ins.text} -> {c.text} needs {n}")
                    hh.append(c)

    def finish(self):
        self.insert_waits()
        self.insert_nops()
    def text(self):
        L = []
        for it in self.items:
            if isinstance(it, Ins): L.append('    ' + it.text)
            elif it[0] == 'label': L.append(it[1] + ':')
            elif it[0] == 'raw': L.append(it[1])
        return '\n'.join(L) + '\n'
    def count(self):
        from collections import Counter
        return Counter(i.kind for i in self.items if isinstance(i, Ins))

def interleave(primary, secondary, start=0, every=1, per=1):
    out = []; j = 0
    for i, p in enumerate(primary):
        out.append(p)
        if i >= start and (i - start) % every == 0:
            for _ in range(per):
                if j < len(secondary):
                    out.append(secondary[j]); j += 1
    out.extend(secondary[j:])
    return out
```

```python
from asmgen import *
import struct

def f2u(x): return struct.unpack('<I', struct.pack('<f', x))[0]

SLOT = 16384
NSLOT = 5
CSCALE = 1.4426950408889634 / (128 ** 0.5)

AV = 4
AK = 12
VD = 16
WD = 18
T = 20
XV = 2
NM = 24
S0 = 36
FR = 72
AO = 0; AOS = 64; AL = 96; AONES = 108; AQ = 112
QACC = 24; XB = 0; WF = 120

sW_ = 3
sX, sWq, sK, sV, sO = 24, 28, 32, 36, 40
sJ, sKs, sVs, sTile, sT0, sT1, sC, sClamp, sMask = 44, 45, 46, 47, 48, 49, 50, 51, 52
sXo = 53
sWb = 56
sM0b = 57
sD = 58
sPrevV = 59

def v(i, n=1): return f'v{i}' if n == 1 else f'v[{i}:{i+n-1}]'
def a(i, n=1): return f'a{i}' if n == 1 else f'a[{i}:{i+n-1}]'
def s(i, n=1): return f's{i}' if n == 1 else f's[{i}:{i+n-1}]'

def S_own(kt, qt): return S0 + ((kt >> 1) * 2 + qt) * 8 + (kt & 1) * 4
S_SH = S0 + 32
def P_own(qt, kp): return S0 + (kp * 2 + qt) * 8
def Qown(qt, p): return AQ + qt * 16 + p * 4
def Qsh(sidx): return AQ + 32 + sidx * 4
def Oown(t, qt): return AO + (t * 2 + qt) * 4
def Osh(t): return AOS + t * 4

def prologue(k, nwg, dbg=None):
    k(f's_cmp_ge_u32 s2, {nwg}')
    k('s_cbranch_scc1 L_end')
    k('s_load_dwordx8 s[8:15], s[0:1], 0')
    k('s_load_dwordx8 s[16:23], s[0:1], 40')
    k('s_load_dwordx2 s[4:5], s[0:1], 96')
    k('v_and_b32 v1, 63, v0')
    k('v_lshrrev_b32 v3, 6, v0')
    k('s_nop 0')
    k(f'v_readfirstlane_b32 s{sW_}, v3')
    k('s_and_b32 s60, s2, 7')
    k('s_lshr_b32 s61, s2, 3')
    k('s_lshr_b32 s62, s60, 2')
    k('s_and_b32 s63, s60, 3')
    k('s_lshr_b32 s64, s61, 5')
    k('s_and_b32 s65, s61, 3')
    k('s_lshl_b32 s63, s63, 3')
    k('s_lshl_b32 s64, s64, 2')
    k('s_add_u32 s63, s63, s64')
    k('s_add_u32 s63, s63, s65')
    k('s_lshr_b32 s64, s61, 2')
    k('s_and_b32 s64, s64, 7')
    k('s_waitcnt lgkmcnt(0)')
    k('s_cmp_eq_u32 s62, 0')
    for i in range(8):
        k(f's_cselect_b32 s{8+i}, s{8+i}, s{16+i}')
    k('s_mul_i32 s66, s64, 184320')
    k(f's_add_u32 s{sX}, s8, s66'); k(f's_addc_u32 s{sX+1}, s9, 0')
    k(f's_mov_b32 s{sX+2}, 184320'); k(f's_mov_b32 s{sX+3}, 0x20000')
    k('s_lshl_b32 s66, s63, 8')
    k(f's_add_u32 s{sWq}, s14, s66'); k(f's_addc_u32 s{sWq+1}, s15, 0')
    k(f's_sub_u32 s{sWq+2}, 5242880, s66'); k(f's_mov_b32 s{sWq+3}, 0x20000')
    k('s_lshl_b32 s66, s64, 5'); k('s_add_u32 s66, s66, s63'); k('s_lshl_b32 s67, s66, 17')
    k(f's_add_u32 s{sK}, s10, s67'); k(f's_addc_u32 s{sK+1}, s11, 0')
    k(f's_mov_b32 s{sK+2}, 131072'); k(f's_mov_b32 s{sK+3}, 0x20000')
    k(f's_add_u32 s{sV}, s12, s67'); k(f's_addc_u32 s{sV+1}, s13, 0')
    k(f's_mov_b32 s{sV+2}, 131072'); k(f's_mov_b32 s{sV+3}, 0x20000')
    k('s_lshl_b32 s67, s62, 8'); k('s_add_u32 s66, s66, s67'); k('s_mul_i32 s66, s66, 36864')
    k(f's_add_u32 s{sO}, s4, s66'); k(f's_addc_u32 s{sO+1}, s5, 0')
    k(f's_mov_b32 s{sO+2}, 36864'); k(f's_mov_b32 s{sO+3}, 0x20000')
    k(f's_lshl_b32 s{sM0b}, s{sW_}, 12')
    k(f's_mov_b32 s{sC}, {f2u(CSCALE):#x}')
    k(f's_mov_b32 s{sMask}, 0x40004000')
    k(f's_mul_i32 s{sXo}, s{sW_}, {32*1280}')
    k(f's_add_u32 s{sXo+1}, s{sXo}, {16*1280}')
    k(f's_mov_b32 s{sXo+2}, {128*1280}')
    k(f's_lshr_b32 s66, s{sW_}, 1'); k('s_lshl_b32 s66, s66, 18')
    k(f's_and_b32 s67, s{sW_}, 1'); k('s_lshl_b32 s67, s67, 15')
    k(f's_add_u32 s{sWb}, s66, s67')
    k('v_and_b32 v20, 15, v1')
    k('v_lshrrev_b32 v21, 4, v1')
    k('v_bfe_u32 v22, v1, 2, 2')
    k('v_and_b32 v23, 3, v1')
    k('v_mul_u32_u24 v2, 1280, v20')
    k(f'v_lshl_add_u32 v{XV}, v21, 4, v2')
    k('v_lshlrev_b32 v3, 1, v21')
    k('v_xor_b32 v3, v20, v3')
    k('v_lshlrev_b32 v3, 4, v3')
    k(f'v_lshl_add_u32 v{VD}, v21, 8, v3')
    k(f'v_xor_b32 v{VD+1}, 128, v{VD}')
    k(f'v_lshl_add_u32 v{WD}, v21, 13, v3')
    k(f'v_xor_b32 v{WD+1}, 128, v{WD}')
    k('v_lshl_add_u32 v3, v21, 2, v22')
    k('v_lshlrev_b32 v0, 8, v3')
    k('v_lshl_add_u32 v0, v23, 3, v0')
    k('v_and_b32 v3, 7, v3')
    k(f's_lshl_b32 s66, s{sW_}, 1')
    for t in range(8):
        k(f's_add_u32 s67, s66, {t}'); k('s_and_b32 s67, s67, 7')
        k(f'v_xor_b32 v{AV+t}, s67, v3')
        k(f'v_lshl_add_u32 v{AV+t}, v{AV+t}, 5, v0')
    k('v_and_b32 v3, 7, v20'); k('v_lshlrev_b32 v3, 1, v3'); k('v_xor_b32 v3, v21, v3')
    k('v_lshlrev_b32 v3, 4, v3')
    k(f'v_lshl_add_u32 v{AK}, v20, 8, v3')
    for si in range(1, 4):
        k(f'v_xor_b32 v{AK+si}, {64*si}, v{AK}')

def dma_w(k, st):
    slot = st % NSLOT
    k(f's_add_u32 m0, s{sM0b}, {slot*SLOT}')
    for il in range(4):
        k(f's_add_u32 s{sT0}, s{sWb}, {st*64*8192 + il*(65536-1024)}')
        k(f'buffer_load_dwordx4 v{WD + (il&1)}, {s(sWq,4)}, s{sT0} offen offset:{il*1024} lds', tag=f'tile{st}')

def dma_kv_static(k, n):
    j = (n - 10) // 2
    srd = sK if (n % 2 == 0) else sV
    slot = n % NSLOT
    k(f's_add_u32 m0, s{sM0b}, {slot*SLOT}')
    k(f's_add_u32 s{sT0}, s{sM0b}, {j*16384}')
    for il in range(4):
        k(f'buffer_load_dwordx4 v{VD + (il&1)}, {s(srd,4)}, s{sT0} offen offset:{il*1024} nt lds', tag=f'tile{n}')

def x_loads(k, st):
    b = XB + (st % 5) * 24
    for ks in range(2):
        for tl in range(3):
            k(f'buffer_load_dwordx4 {a(b + (ks*3+tl)*4, 4)}, v{XV}, {s(sX,4)}, s{sXo+tl} offen offset:{(2*st+ks)*64}')

def qp_stage(k, st):
    xb = XB + (st % 5) * 24
    reads = []; mf = []
    seq = []
    nfr = 6
    fi = 0
    items = []
    for ks in range(2):
        for t in range(8):
            f = WF + (fi % nfr) * 4; fi += 1
            rd = [f'ds_read_b64_tr_b16 {a(f,2)}, v{AV+t} offset:{ks*8192}',
                  f'ds_read_b64_tr_b16 {a(f+2,2)}, v{AV+t} offset:{ks*8192+4096}']
            m = []
            for qt in range(2):
                acc = QACC + (t*2+qt)*4
                c = v(acc,4) if not (st == 0 and ks == 0) else '0'
                m.append(f'v_mfma_f32_16x16x32_bf16 {v(acc,4)}, {a(f,4)}, {a(xb + (ks*3+qt)*4, 4)}, {c}')
            if t < 2:
                acc = QACC + 64 + t*4
                c = v(acc,4) if not (st == 0 and ks == 0) else '0'
                m.append(f'v_mfma_f32_16x16x32_bf16 {v(acc,4)}, {a(f,4)}, {a(xb + (ks*3+2)*4, 4)}, {c}')
            items.append((rd, m))
    ahead = nfr - 1
    for i in range(min(ahead, len(items))):
        for r_ in items[i][0]: k(r_)
    for i, (rd, m) in enumerate(items):
        if i + ahead < len(items):
            for r_ in items[i + ahead][0]: k(r_)
        for m_ in m: k(m_)

def cvt_frag(k, srcX, srcY, tmp):
    for r_ in (srcX, srcY):
        k(f'v_pk_mul_f32 {v(r_,2)}, {v(r_,2)}, {s(sC-0,2)} op_sel_hi:[1,0]')
        k(f'v_pk_mul_f32 {v(r_+2,2)}, {v(r_+2,2)}, {s(sC-0,2)} op_sel_hi:[1,0]')
    k(f'v_cvt_pk_bf16_f32 v{tmp}, v{srcX}, v{srcX+1}')
    k(f'v_cvt_pk_bf16_f32 v{tmp+1}, v{srcX+2}, v{srcX+3}')
    k(f'v_cvt_pk_bf16_f32 v{tmp+2}, v{srcY}, v{srcY+1}')
    k(f'v_cvt_pk_bf16_f32 v{tmp+3}, v{srcY+2}, v{srcY+3}')
    k(f'v_permlane32_swap_b32 v{tmp}, v{tmp+2}')
    k(f'v_permlane32_swap_b32 v{tmp+1}, v{tmp+3}')
    k(f'v_permlane16_swap_b32 v{tmp}, v{tmp+2}')
    k(f'v_permlane16_swap_b32 v{tmp+1}, v{tmp+3}')

def add_av(k, sreg):
    for t in range(8):
        k(f'v_add_u32 v{AV+t}, s{sreg}, v{AV+t}')

def qp_phase(k, dbg_q=False):
    for st in range(5):
        dma_w(k, st)
        if st == 0:
            x_loads(k, 0)
    for st in range(1, 5): x_loads(k, st)
    for st in range(10):
        k.wait_tag(f'tile{st}', lgkm0=True)
        k('s_barrier')
        n = st + 4
        if st >= 1:
            if n < 10: dma_w(k, n)
            else: dma_kv_static(k, n)
        qp_stage(k, st)
        if st + 5 < 10: x_loads(k, st + 5)
        if st < 9:
            d = ((st + 1) % NSLOT - st % NSLOT) * SLOT
            k(f's_mov_b32 s{sD}, {d & 0xffffffff:#x}')
            add_av(k, sD)
    stamp(k, 2)
    k(f's_mov_b32 s{sD}, {((1 - 4) * SLOT) & 0xffffffff:#x}')
    k('s_waitcnt lgkmcnt(0)')
    k('s_barrier')
    add_av(k, sD)
    cvt_frag(k, QACC + 64, QACC + 68, T)
    k('v_lshlrev_b32 v0, 4, v1')
    k(f's_lshl_b32 s{sT0}, s{sW_}, 10')
    k(f's_add_u32 s{sT0}, s{sT0}, {4*SLOT}')
    k(f'v_add_u32 v3, s{sT0}, v0')
    k(f'ds_write_b128 v3, {v(T,4)}')
    for qt in range(2):
        for p in range(4):
            X = QACC + ((2*p)*2 + qt)*4; Y = QACC + ((2*p+1)*2 + qt)*4
            cvt_frag(k, X, Y, T)
            for i in range(4):
                k(f'v_accvgpr_write_b32 {a(Qown(qt,p)+i)}, v{T+i}')
    k('s_waitcnt lgkmcnt(0)')
    k('s_barrier')
    k(f'v_add_u32 v3, {4*SLOT}, v0')
    for si in range(4):
        k(f'ds_read_b128 {a(Qsh(si),4)}, v3 offset:{si*1024}')
    for i in range(108):
        k(f'v_accvgpr_write_b32 a{i}, 0')
    k(f'v_mov_b32 v3, 0x3f803f80')
    for i in range(4):
        k(f'v_accvgpr_write_b32 {a(AONES+i)}, v3')
    for i in range(12):
        k(f'v_mov_b32 v{NM+i}, 0')

def qk_code(k, w):
    nfr = 6
    items = []
    fi = 0
    for kt in range(4):
        for si in range(4):
            f = FR + (fi % nfr) * 4; fi += 1
            rd = [f'ds_read_b128 {v(f,4)}, v{AK+si} offset:{kt*4096}']
            m = []
            p = (si - w) & 3
            for qt in range(2):
                d = S_own(kt, qt)
                c = v(NM + qt*4, 4) if si == 0 else v(d, 4)
                m.append(f'v_mfma_f32_16x16x32_bf16 {v(d,4)}, {v(f,4)}, {a(Qown(qt,p),4)}, {c}')
            if kt == w:
                c = v(NM + 8, 4) if si == 0 else v(S_SH, 4)
                m.append(f'v_mfma_f32_16x16x32_bf16 {v(S_SH,4)}, {v(f,4)}, {a(Qsh(si),4)}, {c}')
            items.append((rd, m))
    ahead = nfr - 1
    for i in range(ahead):
        for r_ in items[i][0]: k(r_)
    for i, (rd, m) in enumerate(items):
        if i + ahead < len(items):
            for r_ in items[i + ahead][0]: k(r_)
        for m_ in m: k(m_)

def exp_code(k, with_or=True):
    groups = [(P_own(qt, kp), 8) for kp in range(2) for qt in range(2)] + [(S_SH, 4)]
    first = True
    for base, n in groups:
        for i in range(n): k(f'v_exp_f32 v{base+i}, v{base+i}')
        for i in range(n // 2): k(f'v_cvt_pk_bf16_f32 v{base+i}, v{base+2*i}, v{base+2*i+1}')
        if with_or:
            for i in range(0, n // 2, 2):
                if first:
                    k(f'v_or_b32 v{T}, v{base+i}, v{base+i+1}'); first = False
                else:
                    k(f'v_or3_b32 v{T}, v{base+i}, v{base+i+1}, v{T}')

def pv_code(k, w):
    nfr = 6
    items = []
    fi = 0
    for t in range(8):
        for kp in range(2):
            f = FR + (fi % nfr) * 4; fi += 1
            rd = [f'ds_read_b64_tr_b16 {v(f,2)}, v{AV+t} offset:{kp*8192}',
                  f'ds_read_b64_tr_b16 {v(f+2,2)}, v{AV+t} offset:{kp*8192+4096}']
            m = []
            for qt in range(2):
                d = Oown(t, qt)
                m.append(f'v_mfma_f32_16x16x32_bf16 {a(d,4)}, {v(f,4)}, {v(P_own(qt,kp),4)}, {a(d,4)}')
            if kp == (w >> 1):
                d = Osh(t)
                m.append(f'v_mfma_f32_16x16x16_bf16 {a(d,4)}, {v(f + 2*(w&1),2)}, {v(S_SH,2)}, {a(d,4)}')
            items.append((rd, m))
    lm = []
    for qt in range(2):
        for kp in range(2):
            lm.append(f'v_mfma_f32_16x16x32_bf16 {a(AL+qt*4,4)}, {a(AONES,4)}, {v(P_own(qt,kp),4)}, {a(AL+qt*4,4)}')
    lm.append(f'v_mfma_f32_16x16x16_bf16 {a(AL+8,4)}, {a(AONES,2)}, {v(S_SH,2)}, {a(AL+8,4)}')
    ahead = nfr - 1
    for i in range(ahead):
        for r_ in items[i][0]: k(r_)
    for m_ in lm: k(m_)
    for i, (rd, m) in enumerate(items):
        if i + ahead < len(items):
            for r_ in items[i + ahead][0]: k(r_)
        for m_ in m: k(m_)

def xlane_max(k, r, tmp):
    k(f'v_mov_b32 v{tmp}, v{r}')
    k(f'v_permlane16_swap_b32 v{r}, v{tmp}')
    k(f'v_max_f32 v{r}, v{r}, v{tmp}')
    k(f'v_mov_b32 v{tmp}, v{r}')
    k(f'v_permlane32_swap_b32 v{r}, v{tmp}')
    k(f'v_max_f32 v{r}, v{r}, v{tmp}')

def rare_code(k, w, lab):
    k.label(f'{lab}_rare')
    k(f's_mov_b32 s{sClamp}, 0')
    qk_code(k, w)
    k(f's_branch {lab}_rare2')
    k.label(f'{lab}_first')
    k(f's_mov_b32 s{sClamp}, 0xff7fffff')
    k.label(f'{lab}_rare2')
    k('s_nop 7')
    sets = [[S_own(kt, qt) + i for kt in range(4) for i in range(4)] for qt in range(2)] + [[S_SH + i for i in range(4)]]
    for ti, regs in enumerate(sets):
        d = T + ti
        k(f'v_max3_f32 v{d}, v{regs[0]}, v{regs[1]}, v{regs[2]}')
        i = 3
        while i < len(regs):
            if i + 1 < len(regs):
                k(f'v_max3_f32 v{d}, v{d}, v{regs[i]}, v{regs[i+1]}'); i += 2
            else:
                k(f'v_max_f32 v{d}, v{d}, v{regs[i]}'); i += 1
        xlane_max(k, d, T + 3)
        k(f'v_add_f32 v{d}, 0x40e00000, v{d}')
        k(f'v_max_f32 v{d}, s{sClamp}, v{d}')
        for r_ in regs: k(f'v_sub_f32 v{r_}, v{r_}, v{d}')
        for i in range(4): k(f'v_sub_f32 v{NM+ti*4+i}, v{NM+ti*4+i}, v{d}')
    k(f's_cmp_lg_u32 s{sClamp}, 0')
    k(f's_cbranch_scc1 {lab}_norescale')
    for ti in range(3):
        k(f'v_exp_f32 v{T+ti}, -v{T+ti}')
    def scale(areg, fac):
        k(f'v_accvgpr_read_b32 v{T+3}, a{areg}')
        k(f'v_mul_f32 v{T+3}, v{T+3}, v{fac}')
        k(f'v_accvgpr_write_b32 a{areg}, v{T+3}')
    for t in range(8):
        for qt in range(2):
            for i in range(4): scale(Oown(t, qt) + i, T + qt)
        for i in range(4): scale(Osh(t) + i, T + 2)
    for ti in range(3):
        for i in range(4): scale(AL + ti*4 + i, T + ti)
    k.label(f'{lab}_norescale')
    exp_code(k, with_or=False)
    k(f's_branch {lab}_after')

def at_loop(k, w):
    lab = f'L_w{w}'
    k(f's_mov_b32 s{sJ}, 0')
    k(f's_mov_b32 s{sKs}, 0')
    k(f's_mov_b32 s{sVs}, {SLOT}')
    k(f's_mov_b32 s{sPrevV}, {4*SLOT}')
    k(f's_mov_b32 s{sTile}, {2*16384}')
    k(f's_add_u32 s{sTile}, s{sTile}, s{sM0b}')
    k('s_waitcnt vmcnt(12) lgkmcnt(0)')
    k('s_barrier')
    k.label(f'{lab}_loop')
    k(f's_cmp_ge_u32 s{sJ}, 6')
    k(f's_cbranch_scc1 {lab}_nodma1')
    k(f's_add_u32 m0, s{sPrevV}, s{sM0b}')
    k('s_nop 0')
    for il in range(4):
        k(f'buffer_load_dwordx4 v{VD + (il&1)}, {s(sK,4)}, s{sTile} offen offset:{il*1024} nt lds')
    k.label(f'{lab}_nodma1')
    qk_code(k, w)
    k(f's_cmp_eq_u32 s{sJ}, 0')
    k(f's_cbranch_scc1 {lab}_first')
    exp_code(k)
    k(f'v_and_b32 v{T}, s{sMask}, v{T}')
    k(f'v_cmp_ne_u32 vcc, 0, v{T}')
    k(f's_cbranch_vccnz {lab}_rare')
    k.label(f'{lab}_after')
    k(f's_cmp_lt_u32 s{sJ}, 6'); k(f's_cbranch_scc1 {lab}_wa')
    k(f's_cmp_eq_u32 s{sJ}, 6'); k(f's_cbranch_scc1 {lab}_wb')
    k('s_waitcnt vmcnt(0)'); k(f's_branch {lab}_wc')
    k.label(f'{lab}_wb'); k('s_waitcnt vmcnt(8)'); k(f's_branch {lab}_wc')
    k.label(f'{lab}_wa'); k('s_waitcnt vmcnt(12)')
    k.label(f'{lab}_wc')
    k('s_waitcnt lgkmcnt(0)')
    k('s_barrier')
    k(f's_cmp_ge_u32 s{sJ}, 6')
    k(f's_cbranch_scc1 {lab}_nodma2')
    k(f's_add_u32 m0, s{sKs}, s{sM0b}')
    k('s_nop 0')
    for il in range(4):
        k(f'buffer_load_dwordx4 v{VD + (il&1)}, {s(sV,4)}, s{sTile} offen offset:{il*1024} nt lds')
    k.label(f'{lab}_nodma2')
    k(f's_add_u32 s{sT0}, s{sKs}, {2*SLOT}')
    k(f's_cmp_ge_u32 s{sT0}, {NSLOT*SLOT}')
    k(f's_cselect_b32 s{sT1}, {NSLOT*SLOT}, 0')
    k(f's_sub_u32 s{sT0}, s{sT0}, s{sT1}')
    k(f's_sub_u32 s{sD}, s{sT0}, s{sKs}')
    k(f's_mov_b32 s{sKs}, s{sT0}')
    for si in range(4): k(f'v_add_u32 v{AK+si}, s{sD}, v{AK+si}')
    pv_code(k, w)
    k(f's_mov_b32 s{sPrevV}, s{sVs}')
    k(f's_add_u32 s{sT0}, s{sVs}, {2*SLOT}')
    k(f's_cmp_ge_u32 s{sT0}, {NSLOT*SLOT}')
    k(f's_cselect_b32 s{sT1}, {NSLOT*SLOT}, 0')
    k(f's_sub_u32 s{sT0}, s{sT0}, s{sT1}')
    k(f's_sub_u32 s{sD}, s{sT0}, s{sVs}')
    k(f's_mov_b32 s{sVs}, s{sT0}')
    add_av(k, sD)
    k(f's_add_u32 s{sTile}, s{sTile}, 16384')
    k(f's_cmp_lt_u32 s{sJ}, 6'); k(f's_cbranch_scc1 {lab}_wd')
    k('s_waitcnt vmcnt(4)'); k(f's_branch {lab}_we')
    k.label(f'{lab}_wd'); k('s_waitcnt vmcnt(12)')
    k.label(f'{lab}_we')
    k('s_waitcnt lgkmcnt(0)')
    k('s_barrier')
    k(f's_add_u32 s{sJ}, s{sJ}, 1')
    k(f's_cmp_lt_u32 s{sJ}, 8')
    k(f's_cbranch_scc1 {lab}_loop')

def at_epilogue(k, w, store_flags=''):
    k('s_nop 7')
    k('v_lshlrev_b32 v0, 4, v1')
    for qt in range(2):
        k(f'v_accvgpr_read_b32 v{T+qt}, a{AL+qt*4}')
    k(f'v_accvgpr_read_b32 v{T+2}, a{AL+8}')
    k('v_lshlrev_b32 v3, 2, v1')
    k(f'ds_write_b32 v3, v{NM+8} offset:{w*256}')
    k(f'ds_write_b32 v3, v{T+2} offset:{1024 + w*256}')
    for qt in range(2):
        k(f'v_rcp_f32 v{T+qt}, v{T+qt}')
    k('s_waitcnt lgkmcnt(0)')
    k('s_barrier')
    for ww in range(4):
        k(f'ds_read_b32 v{NM+ww}, v3 offset:{ww*256}')
        k(f'ds_read_b32 v{NM+4+ww}, v3 offset:{1024 + ww*256}')
    F = FR
    cnt = 0
    for qt in range(2):
        for p in range(4):
            f = F + (cnt % 3) * 8; cnt += 1
            for i in range(4):
                k(f'v_accvgpr_read_b32 v{f+i}, a{Oown(2*p, qt)+i}')
                k(f'v_accvgpr_read_b32 v{f+4+i}, a{Oown(2*p+1, qt)+i}')
            for i in range(8):
                k(f'v_mul_f32 v{f+i}, v{f+i}, v{T+qt}')
            for i in range(4):
                k(f'v_cvt_pk_bf16_f32 v{f+i}, v{f+2*i}, v{f+2*i+1}')
            off = ((2*w + qt) * 4 + ((p + w) & 3)) * 1024
            k(f's_mov_b32 s{sT0}, {off}')
            k(f'buffer_store_dwordx4 {v(f,4)}, v0, {s(sO,4)}, s{sT0} offen {store_flags}')
    k(f'v_min_f32 v{T}, v{NM}, v{NM+1}')
    k(f'v_min3_f32 v{T}, v{T}, v{NM+2}, v{NM+3}')
    for ww in range(4):
        k(f'v_sub_f32 v{NM+ww}, v{T}, v{NM+ww}')
    for ww in range(4):
        k(f'v_exp_f32 v{NM+ww}, v{NM+ww}')
    k('s_nop 0')
    k(f'v_mul_f32 v{T+1}, v{NM}, v{NM+4}')
    for ww in range(1, 4):
        k(f'v_fmac_f32 v{T+1}, v{NM+ww}, v{NM+4+ww}')
    k(f'v_rcp_f32 v{T+1}, v{T+1}')
    k('s_nop 0')
    k(f'v_mul_f32 v{T+1}, v{T+1}, v{NM+w}')
    k(f'v_add_u32 v3, {4096 + w*8192}, v0')
    for t in range(8):
        f = S0 + (t % 4) * 4
        for i in range(4):
            k(f'v_accvgpr_read_b32 v{f+i}, a{Osh(t)+i}')
        for i in range(4):
            k(f'v_mul_f32 v{f+i}, v{f+i}, v{T+1}')
        k(f'ds_write_b128 v3, {v(f,4)} offset:{((t + 2*w) & 7) * 1024}')
    k('s_waitcnt lgkmcnt(0)')
    k('s_barrier')
    k(f'v_add_u32 v3, 4096, v0')
    for ww in range(4):
        for h in range(2):
            k(f'ds_read_b128 {v(S0 + (ww*2+h)*4, 4)}, v3 offset:{ww*8192 + (2*w+h)*1024}')
    for h in range(2):
        for i in range(4):
            r0 = S0 + h*4 + i
            k(f'v_add_f32 v{r0}, v{r0}, v{r0+8}')
            k(f'v_add_f32 v{r0+16}, v{r0+16}, v{r0+24}')
            k(f'v_add_f32 v{r0}, v{r0}, v{r0+16}')
    for i in range(4):
        k(f'v_cvt_pk_bf16_f32 v{S0+i}, v{S0+2*i}, v{S0+2*i+1}')
    k(f's_mov_b32 s{sT0}, {(8*4 + w) * 1024}')
    k(f'buffer_store_dwordx4 {v(S0,4)}, v0, {s(sO,4)}, s{sT0} offen {store_flags}')

STAMP = False
def stamp(k, i):
    if STAMP:
        k(f's_memtime s[{70+2*i}:{71+2*i}]')
def dump_stamps(k, n, wgreg='s2', wavereg='s3', wsreg='s[4:5]', nw=4):
    if not STAMP: return
    k('s_waitcnt lgkmcnt(0) vmcnt(0)')
    k(f's_mul_i32 s68, {wgreg}, {nw}'); k(f's_add_u32 s68, s68, {wavereg}'); k('s_lshl_b32 s68, s68, 7')
    k('s_add_u32 s68, s68, 0x4000000')
    k('v_mov_b32 v0, s68')
    for i in range(n):
        k(f'v_mov_b32 v2, s{70+2*i}'); k(f'v_mov_b32 v3, s{71+2*i}')
        k(f'global_store_dwordx2 v0, v[2:3], {wsreg} offset:{8*i}')
    k('s_waitcnt vmcnt(0)')

def build(nwg=512, store_flags=''):
    k = Prog()
    stamp(k, 0)
    prologue(k, nwg)
    stamp(k, 1)
    qp_phase(k)
    k('s_waitcnt lgkmcnt(0)')
    for w in range(1, 4):
        k(f's_cmp_eq_u32 s{sW_}, {w}')
        k(f's_cbranch_scc1 L_wave{w}')
    for w in range(4):
        k.label(f'L_wave{w}')
        k.reset_state()
        stamp(k, 3)
        at_loop(k, w)
        stamp(k, 4)
        at_epilogue(k, w, store_flags)
        k('s_waitcnt vmcnt(0)')
        stamp(k, 5)
        dump_stamps(k, 6)
        k('s_endpgm')
        rare_code(k, w, f'L_w{w}')
    k.label('L_end')
    k('s_endpgm')
    k.finish()
    return k

if __name__ == '__main__':
    k = build()
    print(k.count())
    open('k1_body.s', 'w').write(k.text())
```

```python
import sys
import importlib
kd = importlib.import_module(next((x[4:] for x in sys.argv if x.startswith('mod=')), 'kd'))
from k23 import *
NAME = "concat_heads__mha_block_cached__mha_block_cached__near_ridge"
HDR = open('cdna_kernels/' + NAME + '.s.ref').read().split('; Override launch')[0]
def kdesc(name, vg, ag, sg):
    return f""".amdhsa_kernel {name}
  .amdhsa_next_free_vgpr {vg+ag}
  .amdhsa_next_free_sgpr {sg}
  .amdhsa_accum_offset {vg}
  .amdhsa_group_segment_fixed_size 0
  .amdhsa_kernarg_size 104
  .amdhsa_user_sgpr_count 2
  .amdhsa_user_sgpr_kernarg_segment_ptr 1
  .amdhsa_system_sgpr_workgroup_id_x 1
.end_amdhsa_kernel
"""
def kern(name, body):
    return f".globl {name}\n.p2align 8\n.type {name},@function\n{name}:\n{body}\n"
def main(out, stamps=False):
    kd.STAMP = stamps
    for x in sys.argv:
        if x.startswith('exp='): kd.EXP = x[4:]
        if x.startswith('set:'):
            kk, vv = x[4:].split('=')
            setattr(kd, kk, eval(vv))
    k1 = kd.build(); k2 = build_k2(); k3 = build_k3()
    t = HDR
    launches = [("attn_kernel", 256, 512, 163840), ("oproj_kernel", 240, 256, 131072), ("reduce_kernel", 180, 256, 0)]
    for n, g, b, l in launches:
        t += f"; @launch kernel={n} grid=({g},1,1) block=({b},1,1) lds={l}\n"
    t += '.amdgcn_target "amdgcn-amd-amdhsa--gfx950"\n.text\n'
    t += kern("attn_kernel", k1.text()) + kern("oproj_kernel", k2.text()) + kern("reduce_kernel", k3.text())
    t += '.section .rodata,"a"\n.p2align 6\n' + kdesc("attn_kernel", 96, 160, 96) + '.p2align 6\n' + kdesc("oproj_kernel", 64, 192, 80) + '.p2align 6\n' + kdesc("reduce_kernel", 144, 0, 48)
    open(out, 'w').write(t)
    print(len(t), "bytes;", k1.count())
if __name__ == '__main__':
    main(sys.argv[1], stamps=('stamps' in sys.argv))
```
